```python
import torch

def _softmax(x, axis=-1):
    return torch.softmax(x, dim=axis)
def _gelu(x):
    return torch.nn.functional.gelu(x, approximate="tanh")
def _silu(x):
    return torch.nn.functional.silu(x)
def _sigmoid(x):
    return torch.sigmoid(x)
def _layernorm(x, axis=-1, eps=1e-5):
    m = x.mean(dim=axis, keepdim=True)
    v = x.var(dim=axis, keepdim=True, unbiased=False)
    return (x - m) / torch.sqrt(v + eps)
def _scatter_add(tgt, idx, src, axis=0):
    return tgt.clone().index_add_(axis, idx, src)
def _segment_sum(src, seg, n):
    out = torch.zeros((n,) + src.shape[1:], dtype=src.dtype)
    return out.index_add_(0, seg, src)
def _pad(x, pw):
    flat = tuple(v for pair in reversed(pw) for v in pair)
    return torch.nn.functional.pad(x, flat)

kernel_name = 'gated_mix__spectral_gfnet__ssm_conv_s5__prompt'

def setup_inputs():

    _w = (lambda a: (lambda t: t.to(torch.bfloat16) if t.is_floating_point() else t)(torch.as_tensor(a)))
    def _A_setup():
        B, S, D = 1, 2048, 640
        Df = D // 2 + 1
        return {
            "x": _w((lambda *s: torch.randn(*s, dtype=torch.bfloat16) * 0.05)(B, S, D)),
            "w_r": _w((lambda *s: torch.randn(*s, dtype=torch.bfloat16) * 0.8)(S, Df) * 0.02),
            "w_i": _w((lambda *s: torch.randn(*s, dtype=torch.bfloat16) * 0.8)(S, Df) * 0.02),
        }
    _A_in = _A_setup()

    def _B_setup():
        B, S, D = 1, 2048, 640
        P = D
        Lambda_re = -0.5 * (lambda _x: torch.exp(torch.as_tensor(_x)))((lambda *s: torch.randn(*s, dtype=torch.bfloat16) * 0.2)(P))
        Lambda_im = (lambda *s: torch.randn(*s, dtype=torch.bfloat16) * 0.2)(P) * 1.0
        B_re = (lambda *s: torch.randn(*s, dtype=torch.bfloat16) * 0.2)(P, D) * (D ** -0.5)
        B_im = (lambda *s: torch.randn(*s, dtype=torch.bfloat16) * 0.2)(P, D) * (D ** -0.5)
        C_re = (lambda *s: torch.randn(*s, dtype=torch.bfloat16) * 0.2)(D, P) * (P ** -0.5)
        C_im = (lambda *s: torch.randn(*s, dtype=torch.bfloat16) * 0.2)(D, P) * (P ** -0.5)
        log_dt = (lambda *s: torch.randn(*s, dtype=torch.bfloat16) * 0.2)(P) * 0.3 - 2.0
        Dskip = (lambda *s: torch.randn(*s, dtype=torch.bfloat16) * 0.05)(D)
        return {
            "x": _w((lambda *s: torch.randn(*s, dtype=torch.bfloat16) * 0.05)(B, S, D)),
            "Lambda_re": _w(Lambda_re),
            "Lambda_im": _w(Lambda_im),
            "B_re": _w(B_re),
            "B_im": _w(B_im),
            "C_re": _w(C_re),
            "C_im": _w(C_im),
            "log_dt": _w(log_dt),
            "Dskip": _w(Dskip),
        }
    _B_in = _B_setup()

    return {
        "A_x": _A_in["x"],
        "A_w_r": _A_in["w_r"],
        "A_w_i": _A_in["w_i"],
        "B_x": _B_in["x"],
        "B_Lambda_re": _B_in["Lambda_re"],
        "B_Lambda_im": _B_in["Lambda_im"],
        "B_B_re": _B_in["B_re"],
        "B_B_im": _B_in["B_im"],
        "B_C_re": _B_in["C_re"],
        "B_C_im": _B_in["C_im"],
        "B_log_dt": _B_in["log_dt"],
        "B_Dskip": _B_in["Dskip"],
        "gate_w": _w((lambda *s: torch.randn(*s, dtype=torch.bfloat16) * 0.05)(640) * 16.0),
    }

def reference(A_x, A_w_r, A_w_i, B_x, B_Lambda_re, B_Lambda_im, B_B_re, B_B_im, B_C_re, B_C_im, B_log_dt, B_Dskip, gate_w):
    def _A_ref(x, w_r, w_i):
        B, S, D = x.shape
        X = (lambda x, axes=(-2,-1): torch.fft.rfft2(x.float(), dim=axes))(x, axes=(-2, -1))
        W = w_r + 1j * w_i
        X = X * W
        y = (lambda x, s, axes=(-2,-1): torch.fft.irfft2(x, s=s, dim=axes).to(torch.bfloat16))(X, (S, D), axes=(-2, -1))
        return y

    def _B_ref(x, Lambda_re, Lambda_im, B_re, B_im, C_re, C_im, log_dt, Dskip):
        Bsz, L, H = x.shape
        Lam = Lambda_re + 1j * Lambda_im
        Bmat = B_re + 1j * B_im
        Cmat = C_re + 1j * C_im
        dt = torch.exp(log_dt)
        Lam_bar = torch.exp(dt * Lam)
        B_bar = ((Lam_bar - 1.0) / Lam)[:, None] * Bmat
        Bu = torch.einsum("bld,pd->blp", x + 0j, B_bar)
        h = torch.zeros_like(Bu[:, 0, :])
        hs = []
        for t in range(L):
            h = Lam_bar[None, :] * h + Bu[:, t, :]
            hs.append(h)
        hseq = torch.stack(hs, 1)
        y = 2.0 * torch.einsum("blp,dp->bld", hseq, Cmat).real + x * Dskip[None, None, :]
        return y

    x = A_x
    g = _sigmoid((x * gate_w).sum(-1, keepdims=True))
    a = _A_ref(x, A_w_r, A_w_i)
    b = _B_ref(x, B_Lambda_re, B_Lambda_im, B_B_re, B_B_im, B_C_re, B_C_im, B_log_dt, B_Dskip)
    return g * a + (1 - g) * b
```

```python
HEADER = '.amdgcn_target "amdgcn-amd-amdhsa--gfx950"\n.text\n'
def kernel_begin(name):
    return f".globl {name}\n.p2align 8\n.type {name},@function\n{name}:\n"
def kd(name, vgpr, sgpr=102, accum=None):
    if accum is None:
        accum = min(256, (vgpr+3)//4*4)
    return f""".amdhsa_kernel {name}
  .amdhsa_next_free_vgpr {vgpr}
  .amdhsa_next_free_sgpr {sgpr}
  .amdhsa_accum_offset {accum}
  .amdhsa_group_segment_fixed_size 0
  .amdhsa_kernarg_size 128
  .amdhsa_user_sgpr_count 2
  .amdhsa_user_sgpr_kernarg_segment_ptr 1
  .amdhsa_system_sgpr_workgroup_id_x 1
.end_amdhsa_kernel
"""
def rodata_begin():
    return '.section .rodata,"a"\n.p2align 6\n'
```

```python
import re, copy
TRANS = ("v_exp_f32","v_log_f32","v_rcp_f32","v_rsq_f32","v_sqrt_f32","v_sin_f32","v_cos_f32","v_rcp_iflag_f32")
_reg = re.compile(r"(?<![\w.])([vas])(?:\[(\d+):(\d+)\]|(\d+))(?![\w])")
def regs_of(op):
    out = []
    for m in _reg.finditer(op):
        k = m.group(1)
        if m.group(2) is not None: out += [(k, i) for i in range(int(m.group(2)), int(m.group(3))+1)]
        else: out.append((k, int(m.group(4))))
    for nm in ("vcc", "exec", "m0"):
        if re.search(r"(?<![\w])"+nm+r"(?![\w])", op) or re.search(r"(?<![\w])"+nm+r"_(lo|hi)(?![\w])", op): out.append((nm, 0))
    return out
def split_ops(rest):
    ops, depth, cur = [], 0, ""
    for ch in rest:
        if ch in "[(": depth += 1
        if ch in "])": depth -= 1
        if ch == "," and depth == 0: ops.append(cur.strip()); cur = ""
        else: cur += ch
    if cur.strip(): ops.append(cur.strip())
    return ops
class Ins:
    def __init__(self, text):
        self.text = text
        t = text.split(";")[0].strip()
        self.label = t[:-1] if t.endswith(":") else None
        self.op = None
        self.rd, self.wr = [], []
        if self.label or not t or t.startswith("."): return
        p = t.split(None, 1)
        op = p[0]; self.op = op
        ops = split_ops(p[1]) if len(p) > 1 else []
        mods = ""
        if ops:
            l = ops[-1].split(None, 1)
            if len(l) > 1 and not op.startswith("s_waitcnt"): ops[-1], mods = l[0], l[1]
        self.ops, self.mods = ops, mods
        R = [regs_of(o) for o in ops]
        self.mfma = op.startswith("v_mfma")
        self.valu = op.startswith("v_") and not self.mfma
        self.trans = any(op.startswith(x) for x in TRANS)
        self.vmem = op.startswith("buffer_") or op.startswith("global_")
        self.ds = op.startswith("ds_")
        self.salu = op.startswith("s_")
        self.dpp = "dpp" in op or "quad_perm" in mods or "row_" in mods
        self.ldsdma = self.vmem and (" lds" in (" "+mods) or "load_lds" in op)
        self.dot = op.startswith("v_dot")
        self.wide_store = self.vmem and "store" in op and ("x3" in op or "x4" in op)
        self.branch = op in ("s_branch",) or op.startswith("s_cbranch")
        self.target = ops[0] if self.branch else None
        if self.mfma:
            self.D, self.A, self.B, self.C = R[0], R[1], R[2], R[3]
            self.passes = 8 if "32x32x16" in op else 4
            assert "32x32x16" in op or "16x16x32" in op, op
            self.wr = self.D; self.rd = self.A + self.B + self.C
        elif self.valu:
            nd = 1
            if re.match(r"v_(add|sub|subrev|addc|subb|subbrev)_co_", op) or op.startswith("v_div_scale") or op.startswith("v_mad_u64"): nd = 2
            self.wr = sum(R[:nd], []); self.rd = sum(R[nd:], [])
            if op.startswith(("v_fmac", "v_pk_fmac", "v_dot2c", "v_mac")) or self.dpp or op.startswith("v_writelane"): self.rd += R[0]
            if op.startswith("v_permlane") and "swap" in op: self.wr = R[0]+R[1]; self.rd = R[0]+R[1]
            if op.startswith("v_cmpx"): self.wr += [("exec", 0)]
            if op.startswith("v_nop"): self.wr = []; self.rd = []
        elif self.vmem:
            if op in ("buffer_wbl2", "buffer_inv"): pass
            elif self.ldsdma: self.rd = sum(R, []) + [("m0", 0)]
            elif "store" in op:
                self.rd = sum(R, [])
                self.data = R[0] if op.startswith("buffer_") else R[1]
            elif "atomic" in op:
                self.rd = sum(R, [])
                if "sc0" in mods: self.wr = R[0]
            else:
                self.wr = R[0]; self.rd = sum(R[1:], [])
                if "d16" in op: self.rd += R[0]
        elif self.ds:
            if "read" in op or "permute" in op or "swizzle" in op: self.wr = R[0]; self.rd = sum(R[1:], [])
            else: self.rd = sum(R, [])
        elif self.salu:
            if op.startswith(("s_cmp", "s_bitcmp", "s_waitcnt", "s_nop", "s_barrier", "s_endpgm", "s_setprio", "s_sleep")) or self.branch: self.rd = sum(R, [])
            else:
                self.wr = R[0] if R else []; self.rd = sum(R[1:], [])
                if "saveexec" in op: self.wr = self.wr + [("exec", 0)]
    def states(self):
        if self.op is None: return 0
        if self.op == "s_nop": return int(self.ops[0], 0) + 1
        return 1
class State:
    def __init__(self):
        self.pos = 0
        self.valu_w = {}; self.trans_w = {}; self.mfma_w = {}; self.mfma_c = {}; self.store_d = {}; self.salu_w = {}; self.dot_w = {}
    def need(self, I):
        n = 0
        def req(tbl, r, ws):
            nonlocal n
            if r in tbl:
                p = tbl[r] if not isinstance(tbl[r], tuple) else tbl[r][0]
                n = max(n, ws - (self.pos - p - 1))
        if I.op is None: return 0
        if I.mfma:
            for r in I.rd: req(self.valu_w, r, 2)
            for r in I.A + I.B:
                if r in self.mfma_w: req(self.mfma_w, r, self.mfma_w[r][1] + 4)
            for r in I.C:
                if r in self.mfma_w:
                    _, ps, D = self.mfma_w[r]
                    if not (D == tuple(I.C) and ps == I.passes): req(self.mfma_w, r, ps + 2)
            for r in I.D:
                if r in self.mfma_w and r not in I.C: req(self.mfma_w, r, self.mfma_w[r][1] + 2)
            req(self.valu_w, ("exec", 0), 4)
            for r in I.D: req(self.store_d, r, 2)
        else:
            touch = I.rd + I.wr if (I.valu or I.vmem or I.ds) else []
            for r in touch:
                if r in self.mfma_w: req(self.mfma_w, r, self.mfma_w[r][1] + 4)
            if I.valu:
                for r in I.wr:
                    if r in self.mfma_c: req(self.mfma_c, r, self.mfma_c[r][1] - 1)
                    req(self.store_d, r, 2)
                if not I.trans:
                    for r in I.rd: req(self.trans_w, r, 1)
                for r in I.rd:
                    if r[0] in ("s", "vcc", "exec"): req(self.valu_w, r, 4 if I.op.startswith(("v_readlane", "v_writelane", "v_div_fmas")) else 2)
                if I.op.startswith("v_cndmask") or I.op.startswith(("v_addc", "v_subb")):
                    if len(I.ops) < 4 or "vcc" in I.ops[-1]: req(self.valu_w, ("vcc", 0), 2)
                if I.op.startswith(("v_readfirstlane", "v_readlane")):
                    for r in I.rd: req(self.valu_w, r, 1)
                    req(self.valu_w, ("exec", 0), 4)
                if I.dpp or I.op.startswith("v_permlane"):
                    for r in I.rd: req(self.valu_w, r, 2)
                    req(self.valu_w, ("exec", 0), 5)
                for r in I.rd + I.wr:
                    if r in self.dot_w:
                        same_c = I.dot and self.dot_w[r][1] == I.op and (r in regs_of(I.ops[-1]) or I.op.startswith("v_dot2c")) and r not in regs_of(I.ops[1]) + regs_of(I.ops[2])
                        if not same_c: req(self.dot_w, r, 3)
            else:
                for r in I.wr: req(self.store_d, r, 1)
                if I.vmem or I.ds:
                    for r in I.rd:
                        if r in self.dot_w: req(self.dot_w, r, 3)
            if I.vmem:
                for r in I.rd:
                    if r[0] == "s": req(self.valu_w, r, 5)
                if I.ldsdma: req(self.salu_w, ("m0", 0), 1)
        return max(n, 0)
    def step(self, I):
        if I.op is None: return
        p = self.pos
        for r in I.wr:
            for t in (self.valu_w, self.trans_w, self.mfma_w, self.salu_w, self.dot_w): t.pop(r, None)
        if I.mfma:
            for r in I.D: self.mfma_w[r] = (p, I.passes, tuple(I.D))
            for r in I.C: self.mfma_c[r] = (p, I.passes)
        elif I.valu:
            for r in I.wr:
                self.valu_w[r] = p
                if I.trans: self.trans_w[r] = p
                if I.dot: self.dot_w[r] = (p, I.op)
        elif I.salu:
            for r in I.wr: self.salu_w[r] = p
        if I.wide_store:
            for r in I.data: self.store_d[r] = p
        self.pos += I.states()
def nops(n):
    out = []
    while n > 0:
        k = min(n, 16); out.append(Ins(f"s_nop {k-1}")); n -= k
    return out
def hazard_pass(lines):
    ins = [Ins(l) for l in lines]
    labels = {I.label: i for i, I in enumerate(ins) if I.label}
    out = []; st = State(); total = 0
    for I in ins:
        n = st.need(I)
        if I.op and I.branch and I.target in labels:
            s2 = copy.deepcopy(st); s2.pos += n + 1
            start = s2.pos; extra = 0; j = labels[I.target]
            while j < len(ins) and s2.pos - start < 24:
                J = ins[j]
                if J.op:
                    k = s2.need(J)
                    extra = max(extra, k)
                    for r in J.wr:
                        for t in (s2.valu_w, s2.trans_w, s2.mfma_w, s2.salu_w, s2.dot_w): t.pop(r, None)
                    s2.pos += J.states()
                    if J.op in ("s_branch", "s_endpgm"): break
                j += 1
            n += extra
        for N in nops(n):
            out.append(N); st.step(N); total += 1
        out.append(I); st.step(I)
    return [("" if I.label else "    ") + I.text for I in out]

class Alloc:
    def __init__(self, kind, start, limit):
        self.kind, self.next, self.limit, self.hi = kind, start, limit, start
    def __call__(self, n=1, align=None):
        if align is None: align = 1 if n == 1 else (2 if (n == 2 or self.kind != "s") else 4)
        b = (self.next + align - 1)//align*align
        self.next = b + n; self.hi = max(self.hi, self.next)
        assert self.next <= self.limit, f"out of {self.kind} regs: {self.next}"
        return b
    def mark(self): return self.next
    def reset(self, m): self.next = m
def R(kind, b, n=1): return f"{kind}{b}" if n == 1 else f"{kind}[{b}:{b+n-1}]"
def V(b, n=1): return R("v", b, n)
def S(b, n=1): return R("s", b, n)
def AC(b, n=1): return R("a", b, n)
import struct
def f32(x): return "0x%08x" % struct.unpack("<I", struct.pack("<f", x))[0]
class Asm:
    def __init__(self): self.lines = []
    def __call__(self, t): self.lines.append(t)
    def label(self, n): self.lines.append(n + ":")
    def text(self): return "\n".join(hazard_pass(self.lines)) + "\n"
```

```python
import sys, math
from fw import *
from asmlib import *
KN = "gated_mix__spectral_gfnet__ssm_conv_s5__prompt_kernel"

OFF_FL = 0
FL_R, FL_Z, FL_H, FL_X, FL_E = 0, 2048, 4096, 8192, 12288
OFF_G  = 16384;             SZ_G  = 8192
OFF_EG = OFF_G + SZ_G;      SZ_EG = 16*640*16
OFF_R  = OFF_EG + SZ_EG;    SZ_R  = 320*8192
OFF_WT = OFF_R + SZ_R;      SZ_WT = 321*8192
OFF_Z  = OFF_WT + SZ_WT;    SZ_Z  = 32*81920
OFF_H  = OFF_Z + SZ_Z;      SZ_H  = 128*40960
WS_USED = OFF_H + SZ_H
OFF_TS = 64 << 20
DIS = 0x7f000000
P_X, P_WR, P_WI, P_LRE, P_LIM, P_BRE, P_BIM, P_CRE, P_CIM, P_LDT, P_DSK, P_GW, P_OUT, P_DBG, P_WS = 16,18,20,24,26,28,30,32,34,36,38,40,42,44,46
LOG2E = 1.4426950408889634
INV2PI = 0.15915494309189535
WSD = 56
DB = 60
S_T, S_TY, S_ROT = 65, 66, 67
S_TAG, S_CK, S_CL, S_PRE = 68, 69, 70, 71
CD = 72
VC = 250
SB, NB3 = 20480, 6
XO = NB3*SB
EX = 159744
MF16 = "v_mfma_f32_16x16x32_bf16"
WS = f"s[{WSD}:{WSD+3}]"

DEBUG = False
CLK = ["s_memrealtime"]
NSTAMP = 12
DBGOUT = [False]
def stamp(a, i):
    if DEBUG: a(f"{CLK[0]} s[{76+2*i}:{77+2*i}]")
def srd(a, d, base, size, off=0):
    if off:
        a(f"s_add_u32 s{d}, s{base}, {off}")
        a(f"s_addc_u32 s{d+1}, s{base+1}, 0")
    else:
        a(f"s_mov_b32 s{d}, s{base}")
        a(f"s_mov_b32 s{d+1}, s{base+1}")
    a(f"s_mov_b32 s{d+2}, {size}")
    a(f"s_mov_b32 s{d+3}, 0x20000")
def endpgm(a):
    if DEBUG:
        stamp(a, NSTAMP-2)
        a("s_waitcnt vmcnt(0)")
        stamp(a, NSTAMP-1)
        a("s_waitcnt lgkmcnt(0)")
        for i in range(NSTAMP): a(f"v_mov_b32 v{4+i}, s{76+2*i}")
        if DBGOUT[0]:
            srd(a, 48, P_DBG, 256)
            a("v_not_b32 v4, v4")
            a("v_mov_b32 v3, 0")
            a("s_mov_b64 exec, 1")
            for i in range(NSTAMP): a(f"buffer_atomic_umax v{4+i}, v3, s[48:51], 0 offen offset:{4*i}")
            a("s_getreg_b32 s15, hwreg(HW_REG_XCC_ID, 0, 4)")
            a("s_and_b32 s4, s2, 7")
            a("s_cmp_lg_u32 s15, s4")
            a("s_cselect_b32 s15, 1, 0")
            a("v_mov_b32 v2, s15")
            a("buffer_atomic_add v2, v3, s[48:51], 0 offen offset:48")
            a("s_endpgm")
            return
        srd(a, 48, P_WS, 1 << 20, OFF_TS)
        a("s_lshl3_add_u32 s4, s2, s3")
        a("s_lshl_b32 s4, s4, 6")
        a("v_mov_b32 v3, 0")
        for i in range(NSTAMP//4): a(f"buffer_store_dwordx4 v[{4+4*i}:{7+4*i}], v3, s[48:51], s4 offen offset:{16*i}")
    a("s_endpgm")

def after_kernarg(a):
    a("s_waitcnt lgkmcnt(0)")
    a(f"s_load_dword s{S_TAG}, s[{P_WS}:{P_WS+1}], {OFF_FL+FL_E}")
    srd(a, WSD, P_WS, WS_USED)
def tag_ready(a):
    a("s_waitcnt lgkmcnt(0)")
    a(f"s_add_u32 s{S_TAG}, s{S_TAG}, 1")

def lam_load(a, vp2, vl):
    a(f"global_load_ushort v{vl}, v{vp2}, s[{P_LRE}:{P_LRE+1}]")
    a(f"global_load_ushort v{vl+1}, v{vp2}, s[{P_LIM}:{P_LIM+1}]")
    a(f"global_load_ushort v{vl+2}, v{vp2}, s[{P_LDT}:{P_LDT+1}]")
def lam_prep(a, vl, vz):
    a(f"v_lshlrev_b32 v{vl+2}, 16, v{vl+2}")
    a(f"v_mul_f32 v{vl+2}, {f32(LOG2E)}, v{vl+2}")
    a(f"v_exp_f32 v{vl+2}, v{vl+2}")
    a(f"v_lshlrev_b32 v{vl}, 16, v{vl}")
    a(f"v_lshlrev_b32 v{vl+1}, 16, v{vl+1}")
    a(f"v_cvt_pk_bf16_f32 v{vl+2}, v{vl+2}, v{vl+2}")
    a(f"v_lshlrev_b32 v{vl+2}, 16, v{vl+2}")
    a(f"v_mul_f32 v{vz}, v{vl+2}, v{vl}")
    a(f"v_mul_f32 v{vz+1}, v{vl+2}, v{vl+1}")
    a(f"v_mul_f32 v{vz}, {f32(LOG2E)}, v{vz}")
    a(f"v_mul_f32 v{vz+1}, {f32(INV2PI)}, v{vz+1}")
def lam_pow(a, vz, n, dr, di, vt):
    ns = n if isinstance(n, str) else f32(float(n))
    a(f"v_mul_f32 v{vt}, {ns}, v{vz}")
    a(f"v_mul_f32 v{di}, {ns}, v{vz+1}")
    a(f"v_exp_f32 v{vt}, v{vt}")
    a(f"v_fract_f32 v{di}, v{di}")
    a(f"v_cos_f32 v{dr}, v{di}")
    a(f"v_sin_f32 v{di}, v{di}")
    a(f"v_mul_f32 v{dr}, v{vt}, v{dr}")
    a(f"v_mul_f32 v{di}, v{vt}, v{di}")
def cfma(a, d, m, h, e):
    a(f"v_fma_f32 v{d}, v{m}, v{h}, v{e}")
    a(f"v_fma_f32 v{d+1}, v{m}, v{h+1}, v{e+1}")
    a(f"v_fma_f32 v{d}, -v{m+1}, v{h+1}, v{d}")
    a(f"v_fmac_f32 v{d+1}, v{m+1}, v{h}")
def cmul(a, d, m, h):
    a(f"v_mul_f32 v{d}, v{m}, v{h}")
    a(f"v_mul_f32 v{d+1}, v{m}, v{h+1}")
    a(f"v_fma_f32 v{d}, -v{m+1}, v{h+1}, v{d}")
    a(f"v_fmac_f32 v{d+1}, v{m+1}, v{h}")
def cmul_pk(a, dst_r, dst_i, xr, xi, c, s, conj):
    n1 = "" if conj else " neg_lo:[1,0,0] neg_hi:[1,0,0]"
    n2 = " neg_lo:[1,0,0] neg_hi:[1,0,0]" if conj else ""
    a(f"v_pk_mul_f32 {V(dst_r,2)}, {V(xr,2)}, {V(c,2)}")
    a(f"v_pk_mul_f32 {V(dst_i,2)}, {V(xi,2)}, {V(c,2)}")
    a(f"v_pk_fma_f32 {V(dst_r,2)}, {V(xi,2)}, {V(s,2)}, {V(dst_r,2)}{n1}")
    a(f"v_pk_fma_f32 {V(dst_i,2)}, {V(xr,2)}, {V(s,2)}, {V(dst_i,2)}{n2}")
class VMQ:
    def __init__(self, a): self.a, self.q = a, []
    def issue(self, text, tag): self.a(text); self.q.append(tag); assert len(self.q) <= 63, "vmcnt overflow"
    def wait(self, tag):
        idx = max(i for i, t in enumerate(self.q) if t == tag)
        self.a(f"s_waitcnt vmcnt({len(self.q)-1-idx})")
        self.q = self.q[idx+1:]
_uid = [0]
def poll(a, addrs, tmps, off):
    _uid[0] += 1; L = f"L_poll{_uid[0]}"
    a("s_mov_b32 s15, 0x20000")
    a.label(L)
    for ad, t in zip(addrs, tmps): a(f"buffer_load_dword v{t}, v{ad}, {WS}, 0 offen offset:{off} sc1")
    a("s_waitcnt vmcnt(0)")
    for t in tmps: a(f"v_xor_b32 v{t}, s{S_TAG}, v{t}")
    for t in tmps[1:]: a(f"v_or_b32 v{tmps[0]}, v{tmps[0]}, v{t}")
    a(f"v_cmp_ne_u32 vcc, 0, v{tmps[0]}")
    a(f"s_cbranch_vccz {L}_ok")
    a("s_sub_u32 s15, s15, 1")
    a(f"s_cbranch_scc0 {L}")
    a.label(L + "_ok")
def flag_store(a, sidx, off, vt):
    a(f"v_mov_b32 v{vt}, s{S_TAG}")
    a(f"s_lshl_b32 s15, s{sidx}, 4")
    a(f"v_mov_b32 v{vt+1}, s15")
    a(f"buffer_store_dword v{vt}, v{vt+1}, {WS}, 0 offen offset:{off} sc1")

def p3_params(a):
    a("s_lshr_b32 s6, s5, 3")
    a(f"s_mul_i32 s{S_ROT}, s6, 5")
    a(f"s_lshr_b32 s{S_ROT}, s{S_ROT}, 1")
    a(f"s_lshl2_add_u32 s{S_T}, s4, s6")
    a(f"s_and_b32 s{S_TY}, s5, 3")
    a("s_bfe_u32 s8, s5, 0x10002")
    a("s_mul_i32 s8, s8, 80")
    a("s_add_u32 s9, s8, 64")
    a(f"s_lshl4_add_u32 s{DB}, s{S_TY}, s8")
    a(f"s_sub_u32 s{DB+1}, 304, s{DB}")
    a(f"s_add_u32 s{DB+2}, 320, s{DB}")
    a(f"s_sub_u32 s{DB+3}, 624, s{DB}")
    a("s_sub_u32 s11, 304, s9")
    a(f"s_bitcmp1_b32 s{S_TY}, 0")
    a(f"s_cselect_b32 s{DB+4}, s11, s9")
    a(f"s_bitcmp1_b32 s{S_TY}, 1")
    a("s_cselect_b32 s10, 320, 0")
    a(f"s_add_u32 s{DB+4}, s{DB+4}, s10")
    a("s_cmp_lt_u32 s3, 6")
    a(f"s_cselect_b32 s{CD}, s{P_CRE}, s{P_CIM}")
    a(f"s_cselect_b32 s{CD+1}, s{P_CRE+1}, s{P_CIM+1}")
    a(f"s_mov_b32 s{CD+2}, 819200")
    a(f"s_mov_b32 s{CD+3}, 0x20000")
def c_setup(a, t):
    a("s_sub_u32 s10, s3, 4")
    a(f"v_lshrrev_b32 v{t}, 3, v0")
    a(f"v_mul_u32_u24 v{t}, 1280, v{t}")
    a(f"v_lshrrev_b32 v{t+1}, 4, v0")
    a(f"v_and_b32 v{t+2}, 7, v0")
    a(f"v_xor_b32 v{t+2}, v{t+2}, v{t+1}")
    a("s_and_b32 s11, s10, 1")
    a("s_lshl_b32 s12, s11, 2")
    a(f"v_xor_b32 v{t+2}, s12, v{t+2}")
    a(f"v_xor_b32 v{t+3}, 4, v{t+2}")
    a(f"v_lshl_add_u32 v{t+2}, v{t+2}, 4, v{t}")
    a(f"v_lshl_add_u32 v{t+3}, v{t+3}, 4, v{t}")
    a("s_cmp_eq_u32 s11, 0")
    for i in range(5):
        rb0, rb1 = i, 5+i
        a(f"s_cselect_b32 s12, s{DB+(rb0>>1)}, s{DB+(rb1>>1)}")
        a(f"s_cselect_b32 s13, {8*(rb0&1)}, {8*(rb1&1)}")
        a(f"v_mov_b32 v{t+4}, s12")
        a(f"v_add_u32 v{t+4}, s13, v{t+4}")
        a(f"v_mul_u32_u24 v{t+4}, 1280, v{t+4}")
        a(f"v_add_u32 v{VC+i}, v{t+4}, v{t+2+(i&1)}")
    a(f"s_mul_i32 s{S_CL}, s10, 5120")
    a(f"s_lshl_b32 s{S_CK}, s{S_ROT}, 7")
def c_issue(a, st):
    for i in range(5):
        a(f"s_add_u32 m0, s{S_CL}, {(st % NB3)*SB + i*1024}")
        a(f"buffer_load_dwordx4 v{VC+i}, s[{CD}:{CD+3}], s{S_CK} offen lds")
    a(f"s_add_u32 s{S_CK}, s{S_CK}, 128")
    a(f"s_cmp_eq_u32 s{S_CK}, 1280")
    a(f"s_cselect_b32 s{S_CK}, 0, s{S_CK}")

def role_B(a):
    NB = 4
    a.label("L_B")
    a("s_and_b32 s6, s5, 1")
    a("s_lshr_b32 s9, s5, 1")
    a("s_lshl1_add_u32 s8, s4, s6")
    a("s_cmp_ge_u32 s3, 4")
    a("s_cbranch_scc0 L_Bc")
    a("s_sub_u32 s10, s3, 4")
    a("s_mul_i32 s11, s6, 5")
    a("s_add_u32 s11, s11, s9")
    a("s_add_u32 s11, s11, s4")
    for _ in range(2):
        a("s_sub_u32 s12, s11, 10")
        a("s_cmp_ge_u32 s11, 10")
        a("s_cselect_b32 s11, s12, s11")
    a("s_lshl_b32 s11, s11, 7")
    a("s_lshl1_add_u32 s12, s8, s10")
    a("s_cmp_lt_u32 s10, 2")
    a("s_cselect_b32 s12, s12, s9")
    a(f"s_mul_i32 s12, s12, {64*1280}")
    a("v_lshrrev_b32 v2, 3, v0")
    a("v_mul_u32_u24 v2, 1280, v2")
    a("v_lshrrev_b32 v3, 4, v0")
    a("v_and_b32 v4, 7, v0")
    a("v_xor_b32 v4, v4, v3")
    a("v_xor_b32 v5, 4, v4")
    a("v_lshl_add_u32 v4, v4, 4, v2")
    a("v_lshl_add_u32 v5, v5, 4, v2")
    VO = 8
    for i in range(8): a(f"v_add_u32 v{VO+i}, {10240*i - 1024*(i&3)}, v{4+(i&1)}")
    a("s_lshl_b32 s13, s10, 13")
    a("s_waitcnt lgkmcnt(0)")
    a("s_cmp_eq_u32 s10, 2")
    a(f"s_cselect_b32 s48, s{P_BRE}, s{P_BIM}")
    a(f"s_cselect_b32 s49, s{P_BRE+1}, s{P_BIM+1}")
    a("s_cmp_lt_u32 s10, 2")
    a(f"s_cselect_b32 s48, s{P_X}, s48")
    a(f"s_cselect_b32 s49, s{P_X+1}, s49")
    a("s_mov_b32 s50, 819200")
    a("s_cselect_b32 s50, 2621440, s50")
    a("s_mov_b32 s51, 0x20000")
    stamp(a, 1)
    vq = VMQ(a)
    def issue(st):
        buf = st % NB
        a("s_add_u32 s14, s12, s11")
        for i in range(8):
            if i % 4 == 0: a(f"s_add_u32 m0, s13, {buf*32768 + (i//4)*4096}")
            vq.issue(f"buffer_load_dwordx4 v{VO+i}, s[48:51], s14 offen offset:{1024*(i&3)} lds", f"st{st}")
        a("s_add_u32 s11, s11, 128")
        a("s_cmp_eq_u32 s11, 1280")
        a("s_cselect_b32 s11, 0, s11")
    issue(0); issue(1)
    after_kernarg(a)
    issued = 2
    va = Alloc("v", 16, VC)
    vl, vz, vt = va(3), va(2), va()
    vp = va()
    for s in range(10):
        vq.wait(f"st{s}")
        if s in (0, 9): stamp(a, {0: 2, 9: 3}[s])
        a("s_barrier")
        for _ in range(2 if s == 1 else 1):
            if issued < 10:
                assert issued - NB <= s - 1
                issue(issued); issued += 1
        if s == 7:
            a(f"v_lshl_add_u32 v{vp}, s9, 6, v0")
            a(f"v_lshlrev_b32 v{vt}, 1, v{vp}")
            lam_load(a, vt, vl); vq.q += ["lam"]*3
            a("s_mov_b32 s52, s8"); a("s_mov_b32 s53, s9")
            p3_params(a)
            c_setup(a, 2)
            a("s_mov_b32 s8, s52"); a("s_mov_b32 s9, s53")
            tag_ready(a)
    m32, m512, mlw = va(2), va(2), va(2)
    a("s_waitcnt vmcnt(0)")
    lam_prep(a, vl, vz)
    lam_pow(a, vz, 32, m32, m32+1, vt)
    lam_pow(a, vz, 512, m512, m512+1, vt)
    a("s_sub_u32 s10, s3, 4")
    a("s_lshl_b32 s11, s10, 7")
    a(f"v_cvt_f32_u32 v{vl}, s11")
    lam_pow(a, vz, f"v{vl}", mlw, mlw+1, vt)
    G = [va(4, 4) for _ in range(4)]
    vex, vga = va(), va()
    a(f"v_lshlrev_b32 v{vex}, 3, v0")
    a(f"v_add_u32 v{vex}, {EX}, v{vex}")
    a(f"v_lshlrev_b32 v{vga}, 4, v{vp}")
    for i in range(4):
        a(f"s_sub_u32 s{48+i}, s8, s10")
        a(f"s_sub_u32 s{48+i}, s{48+i}, {1+4*i}")
        a(f"s_cmp_lt_i32 s{48+i}, 0")
        a(f"s_cselect_b32 s{52+i}, 0, s{S_TAG}")
        a(f"s_mov_b32 s14, {OFF_EG}")
        a(f"s_cselect_b32 s14, {DIS}, s14")
        a(f"s_max_i32 s{48+i}, s{48+i}, 0")
        a(f"s_mul_i32 s{48+i}, s{48+i}, 10240")
        a(f"s_add_u32 s{48+i}, s{48+i}, s14")
    a("s_mul_i32 s12, s8, 10240")
    a(f"s_add_u32 s12, s12, {OFF_EG}")
    a("s_barrier")
    stamp(a, 4)
    a("s_cmp_lg_u32 s3, 4")
    a("s_cbranch_scc1 L_Bl_nopub")
    for s_ in range(4): a(f"ds_read_b64 {V(G[s_],2)}, v{vex} offset:{512*s_}")
    a(f"v_mov_b32 v{G[3]+2}, s{S_TAG}")
    a(f"v_mov_b32 v{G[3]+3}, s{S_TAG}")
    a("s_waitcnt lgkmcnt(0)")
    for s_ in range(1, 4): cfma(a, G[s_], m32, G[s_-1], G[s_])
    a(f"buffer_store_dwordx4 {V(G[3],4)}, v{vga}, {WS}, s12 offen sc1")
    a.label("L_Bl_nopub")
    for st in range(PRE_B): c_issue(a, st)
    a("s_mov_b32 s15, 0x20000")
    a.label("L_Bl_poll")
    for i in range(4): a(f"buffer_load_dwordx4 {V(G[i],4)}, v{vga}, {WS}, s{48+i} offen sc1")
    a("s_waitcnt vmcnt(0)")
    for i in range(4): a(f"v_xor_b32 v{G[i]+2}, s{52+i}, v{G[i]+2}")
    a(f"v_or3_b32 v{vt}, v{G[0]+2}, v{G[1]+2}, v{G[2]+2}")
    a(f"v_or_b32 v{vt}, v{vt}, v{G[3]+2}")
    a(f"v_cmp_ne_u32 vcc, 0, v{vt}")
    a("s_cbranch_vccz L_Bl_ok")
    a("s_sub_u32 s15, s15, 1")
    a("s_cbranch_scc0 L_Bl_poll")
    a.label("L_Bl_ok")
    for i in (2, 1, 0): cfma(a, G[i], m512, G[i+1], G[i])
    cmul(a, G[1], mlw, G[0])
    a("s_lshl_b32 s11, s10, 9")
    a(f"v_add_u32 v{vex}, s11, v{vex}")
    a(f"ds_write_b64 v{vex}, {V(G[1],2)} offset:2048")
    a("s_waitcnt lgkmcnt(0)")
    stamp(a, 5)
    a("s_barrier")
    for st in range(PRE_B, NB3): c_issue(a, st)
    a("s_barrier")
    a("s_branch L_P3l")
    a.label("L_Bc")
    va = Alloc("v", 2, 256)
    a("s_lshr_b32 s10, s3, 1")
    a("s_and_b32 s11, s3, 1")
    vi5, vhf, vt, vt2, vs = va(), va(), va(), va(), va()
    a(f"v_and_b32 v{vi5}, 31, v0")
    a(f"v_lshrrev_b32 v{vhf}, 5, v0")
    a("s_lshl1_add_u32 s12, s9, s11")
    a(f"v_lshl_add_u32 v{vt}, s12, 5, v{vi5}")
    a(f"v_lshlrev_b32 v{vt}, 1, v{vt}")
    vl = va(3); vz = va(2); m32 = va(2); mps = va(2); K = va(2, 2)
    PR, PI = va(16, 2), va(16, 2)
    after_kernarg(a)
    lam_load(a, vt, vl)
    code_prefetch(a, PR)
    vA = [va(4) for _ in range(2)]; vB = [va(4) for _ in range(2)]
    a(f"v_bfe_u32 v{vt}, v{vi5}, 2, 1")
    a(f"v_lshlrev_b32 v{vt}, 5, v{vt}")
    a(f"v_lshrrev_b32 v{vt2}, 3, v{vi5}")
    a(f"v_lshl_add_u32 v{vt}, v{vt2}, 2, v{vt}")
    a(f"v_and_b32 v{vt2}, 3, v{vi5}")
    a(f"v_add_u32 v{vt}, v{vt}, v{vt2}")
    a(f"v_bfe_u32 v{vt2}, v{vt}, 1, 3")
    a(f"v_xor_b32 v{vt2}, v{vt2}, v{vhf}")
    a(f"v_lshlrev_b32 v{vt}, 7, v{vt}")
    a(f"v_lshl_add_u32 v{vt}, v{vt2}, 4, v{vt}")
    a("s_lshl_b32 s13, s10, 13")
    a(f"v_add_u32 v{vA[0]}, s13, v{vt}")
    a(f"v_bfe_u32 v{vt2}, v{vi5}, 1, 3")
    a(f"v_xor_b32 v{vt2}, v{vt2}, v{vhf}")
    a(f"v_lshlrev_b32 v{vt}, 7, v{vi5}")
    a(f"v_lshl_add_u32 v{vt}, v{vt2}, 4, v{vt}")
    a("s_lshl_b32 s13, s11, 12")
    a("s_add_u32 s13, s13, 16384")
    a(f"v_add_u32 v{vB[0]}, s13, v{vt}")
    for X in (vA, vB):
        for kk in range(1, 4): a(f"v_xor_b32 v{X[0]+kk}, {32*kk}, v{X[0]}")
        for kk in range(4): a(f"v_add_u32 v{X[1]+kk}, 65536, v{X[0]+kk}")
    RS, PL, WSZ = 144, 4608, 9216
    vxr, vxw, vw, vr, vu = va(), va(), va(), va(), va()
    a(f"v_lshl_add_u32 v{vs}, s10, 1, v{vhf}")
    a(f"v_lshl_add_u32 v{vxr}, s11, 5, v{vi5}")
    a(f"v_lshlrev_b32 v{vxr}, 3, v{vxr}")
    a(f"v_add_u32 v{vxr}, {EX}, v{vxr}")
    a(f"v_lshl_add_u32 v{vxw}, v{vs}, 9, v{vxr}")
    a(f"s_mul_i32 s13, s3, {WSZ}")
    a(f"s_add_u32 s13, s13, {XO}")
    a(f"v_mul_u32_u24 v{vw}, {RS}, v{vi5}")
    a(f"v_lshl_add_u32 v{vw}, v{vhf}, 6, v{vw}")
    a(f"v_add_u32 v{vw}, s13, v{vw}")
    a(f"v_lshrrev_b32 v{vt}, 4, v0")
    a(f"v_bfe_u32 v{vt2}, v0, 2, 2")
    a(f"v_lshl_add_u32 v{vt}, v{vt}, 3, v{vt2}")
    a(f"v_mul_u32_u24 v{vr}, {RS}, v{vt}")
    a(f"v_and_b32 v{vt}, 3, v0")
    a(f"v_lshl_add_u32 v{vr}, v{vt}, 3, v{vr}")
    a(f"v_add_u32 v{vr}, s13, v{vr}")
    a(f"v_lshlrev_b32 v{vu}, 4, v0")
    a("s_lshl1_add_u32 s14, s8, s10")
    a("s_mul_i32 s14, s14, 80")
    a("s_add_u32 s14, s14, s12")
    a("s_lshl_b32 s14, s14, 11")
    a(f"s_add_u32 s14, s14, {OFF_H}")
    a("s_mul_i32 s7, s8, 10")
    a("s_add_u32 s7, s7, s9")
    tag_ready(a)
    xcc_publish(a, PI)
    a("s_waitcnt vmcnt(0)")
    lam_prep(a, vl, vz)
    for n in range(16): lam_pow(a, vz, n+1, PR+n, PI+n, vt)
    lam_pow(a, vz, 32, m32, m32+1, vt)
    a(f"v_cvt_f32_u32 v{vt2}, v{vs}")
    a(f"v_mul_f32 v{vt2}, {f32(32.0)}, v{vt2}")
    lam_pow(a, vz, f"v{vt2}", mps, mps+1, vt)
    a(f"v_mul_f32 v{vt}, v{vl}, v{vl}")
    a(f"v_fmac_f32 v{vt}, v{vl+1}, v{vl+1}")
    a(f"v_rcp_f32 v{vt}, v{vt}")
    a(f"v_add_f32 v{vt2}, -1.0, v{PR}")
    a(f"v_mul_f32 v{K}, v{vt2}, v{vl}")
    a(f"v_fmac_f32 v{K}, v{PI}, v{vl+1}")
    a(f"v_mul_f32 v{K+1}, v{PI}, v{vl}")
    a(f"v_fma_f32 v{K+1}, -v{vt2}, v{vl+1}, v{K+1}")
    a(f"v_add_f32 v{vt}, v{vt}, v{vt}")
    a(f"v_mul_f32 v{K}, v{K}, v{vt}")
    a(f"v_mul_f32 v{K+1}, v{K+1}, v{vt}")
    F = [va(16, 4) for _ in range(2)]
    acc = [[va(16, 4) for pl in range(2)] for mt in range(2)]
    def read(u):
        s, kk = divmod(u, 4); buf = s % NB
        f = F[u & 1]; bo = (buf & 1)*32768; st = buf >> 1
        for mt in range(2): a(f"ds_read_b128 {V(f+4*mt,4)}, v{vA[st]+kk} offset:{bo+2048*mt}")
        for pl in range(2): a(f"ds_read_b128 {V(f+8+4*pl,4)}, v{vB[st]+kk} offset:{bo+8192*pl}")
    def mf(u, which):
        f = F[u & 1]
        for q in which:
            mt, pl = q >> 1, q & 1
            c = "0" if u == 0 else V(acc[mt][pl], 16)
            a(f"v_mfma_f32_32x32x16_bf16 {V(acc[mt][pl],16)}, {V(f+4*mt,4)}, {V(f+8+4*pl,4)}, {c}")
    stamp(a, 1)
    a("s_barrier")
    stamp(a, 2)
    read(0)
    for u in range(40):
        s, kk = divmod(u, 4)
        if kk < 3:
            read(u+1); a("s_waitcnt lgkmcnt(4)"); mf(u, range(4))
        else:
            a("s_waitcnt lgkmcnt(0)")
            mf(u, (0, 1))
            if s < 9:
                a("s_barrier"); read(u+1)
            mf(u, (2, 3))
    stamp(a, 3)
    for v in range(1, 16):
        for mt in range(2):
            r, im = acc[mt][0], acc[mt][1]
            a(f"v_fmac_f32 v{r+v}, v{PR}, v{r+v-1}")
            a(f"v_fmac_f32 v{im+v}, v{PR}, v{im+v-1}")
        for mt in range(2):
            r, im = acc[mt][0], acc[mt][1]
            a(f"v_fma_f32 v{r+v}, -v{PI}, v{im+v-1}, v{r+v}")
            a(f"v_fmac_f32 v{im+v}, v{PI}, v{r+v-1}")
    T_ = F[0]
    vE, vE0, l16 = T_, T_+2, T_+4
    r0, i0, r1, i1 = acc[0][0]+15, acc[0][1]+15, acc[1][0]+15, acc[1][1]+15
    a(f"v_fma_f32 v{vE}, v{PR+15}, v{r0}, v{r1}")
    a(f"v_fma_f32 v{vE+1}, v{PR+15}, v{i0}, v{i1}")
    a(f"v_fma_f32 v{vE}, -v{PI+15}, v{i0}, v{vE}")
    a(f"v_fmac_f32 v{vE+1}, v{PI+15}, v{r0}")
    a(f"ds_write_b64 v{vxw}, {V(vE,2)}")
    a(f"v_mov_b32 v{vE0}, v{r0}"); a(f"v_mov_b32 v{vE0+1}, v{i0}")
    a(f"v_mov_b32 v{l16}, v{PR+15}"); a(f"v_mov_b32 v{l16+1}, v{PI+15}")
    a("s_waitcnt lgkmcnt(0)")
    a("s_barrier")
    stamp(a, 4)
    EL = [T_+6, T_+8, T_+10]; XF = T_+12; TP = T_+14
    for s_ in range(3): a(f"ds_read_b64 {V(EL[s_],2)}, v{vxr} offset:{512*s_}")
    a(f"v_lshlrev_b32 v{vt}, 3, v{vi5}")
    a("s_lshl_b32 s13, s4, 8")
    a(f"s_add_u32 s13, s13, {OFF_FL+FL_X}")
    a(f"buffer_load_dwordx2 {V(XF,2)}, v{vt}, {WS}, s13 offen sc1")
    for mt in range(2):
        for d in range(8):
            r, im = acc[mt][0]+2*d, acc[mt][1]+2*d
            a(f"v_pk_mul_f32 {V(TP,2)}, {V(r,2)}, {V(K,2)} op_sel:[0,1] neg_lo:[1,0] neg_hi:[1,0]")
            a(f"v_pk_mul_f32 {V(r,2)}, {V(r,2)}, {V(K,2)} op_sel_hi:[1,0]")
            a(f"v_pk_fma_f32 {V(r,2)}, {V(im,2)}, {V(K,2)}, {V(r,2)} op_sel:[0,1,0] neg_lo:[1,0,0] neg_hi:[1,0,0]")
            a(f"v_pk_fma_f32 {V(im,2)}, {V(im,2)}, {V(K,2)}, {V(TP,2)} op_sel_hi:[1,0,1] neg_lo:[1,0,0] neg_hi:[1,0,0]")
    a("s_waitcnt lgkmcnt(0)")
    cfma(a, EL[1], m32, EL[0], EL[1])
    cfma(a, EL[2], m32, EL[1], EL[2])
    LH = T_+16
    a(f"v_cmp_eq_u32 vcc, 1, v{vs}")
    for h in range(2): a(f"v_cndmask_b32 v{LH+h}, 0, v{EL[0]+h}, vcc")
    a(f"v_cmp_eq_u32 vcc, 2, v{vs}")
    for h in range(2): a(f"v_cndmask_b32 v{LH+h}, v{LH+h}, v{EL[1]+h}, vcc")
    a(f"v_cmp_eq_u32 vcc, 3, v{vs}")
    for h in range(2): a(f"v_cndmask_b32 v{LH+h}, v{LH+h}, v{EL[2]+h}, vcc")
    a("s_getreg_b32 s13, hwreg(HW_REG_XCC_ID, 0, 4)")
    a("s_waitcnt vmcnt(0)")
    a(f"v_xor_b32 v{XF}, s{S_TAG}, v{XF}")
    a(f"v_xor_b32 v{XF+1}, s13, v{XF+1}")
    a(f"v_or_b32 v{XF}, v{XF}, v{XF+1}")
    a(f"v_cmp_ne_u32 s[50:51], 0, v{XF}")
    a("s_barrier")
    stamp(a, 5)
    PP = [T_+18, T_+20, T_+22, T_+24]
    for l in range(4): a(f"ds_read_b64 {V(PP[l],2)}, v{vxr} offset:{2048+512*l}")
    a("s_waitcnt lgkmcnt(0)")
    a(f"v_pk_add_f32 {V(PP[0],2)}, {V(PP[0],2)}, {V(PP[1],2)}")
    a(f"v_pk_add_f32 {V(PP[2],2)}, {V(PP[2],2)}, {V(PP[3],2)}")
    a(f"v_pk_add_f32 {V(PP[0],2)}, {V(PP[0],2)}, {V(PP[2],2)}")
    cfma(a, LH, mps, PP[0], LH)
    cfma(a, vE0, l16, LH, vE0)
    CH = [PP[1], PP[2]]
    cmul(a, CH[0], K, LH); cmul(a, CH[1], K, vE0)
    O = [va(4, 4) for i in range(4)]
    for mt in range(2):
        c = CH[mt]
        for d in range(8):
            r, im = acc[mt][0]+2*d, acc[mt][1]+2*d
            a(f"v_pk_fma_f32 {V(r,2)}, {V(PR+2*d,2)}, {V(c,2)}, {V(r,2)} op_sel_hi:[1,0,1]")
            a(f"v_pk_fma_f32 {V(im,2)}, {V(PR+2*d,2)}, {V(c,2)}, {V(im,2)} op_sel:[0,1,0] neg_lo:[1,0,0] neg_hi:[1,0,0]")
            a(f"v_pk_fma_f32 {V(r,2)}, {V(PI+2*d,2)}, {V(c,2)}, {V(r,2)} op_sel:[0,1,0] neg_lo:[1,0,0] neg_hi:[1,0,0]")
            a(f"v_pk_fma_f32 {V(im,2)}, {V(PI+2*d,2)}, {V(c,2)}, {V(im,2)} op_sel_hi:[1,0,1] neg_lo:[1,0,0] neg_hi:[1,0,0]")
            o = 2*(d >> 2)
            a(f"v_cvt_pk_bf16_f32 v{O[o]+(d&3)}, v{r}, v{r+1}")
            a(f"v_cvt_pk_bf16_f32 v{O[o+1]+(d&3)}, v{im}, v{im+1}")
            if d & 3 == 3:
                i8 = 2*mt + (d >> 2)
                a(f"ds_write_b128 v{vw}, {V(O[o],4)} offset:{16*i8}")
                a(f"ds_write_b128 v{vw}, {V(O[o+1],4)} offset:{PL+16*i8}")
    a("s_waitcnt lgkmcnt(0)")
    U = acc[0][0]
    for mt in range(4):
        for pl in range(2):
            f = U + 4*(2*mt+pl)
            for hf in range(2): a(f"ds_read_b64_tr_b16 {V(f+2*hf,2)}, v{vr} offset:{pl*PL + hf*4*RS + mt*32}")
    a("s_cmp_eq_u64 s[50:51], 0")
    a("s_cbranch_scc1 L_Bc_local")
    for var in ("sc1", ""):
        if var == "": a.label("L_Bc_local")
        for mt in range(4):
            for pl in range(2):
                f = U + 4*(2*mt+pl)
                a(f"s_waitcnt lgkmcnt({14 - 2*(2*mt+pl)})")
                a(f"buffer_store_dwordx4 {V(f,4)}, v{vu}, {WS}, s14 offen offset:{1024*pl} {var}")
            if mt < 3: a("s_add_u32 s14, s14, 40960")
        if var: a("s_branch L_Bc_st")
    a.label("L_Bc_st")
    stamp(a, 6)
    a("s_mov_b32 s52, s7")
    p3_params(a)
    a("s_waitcnt vmcnt(0)")
    a("s_barrier")
    a("s_cmp_lg_u32 s3, 0")
    a("s_cbranch_scc1 L_P3c")
    a(f"v_mov_b32 v2, s{S_TAG}")
    a("s_lshl_b32 s15, s52, 4")
    a(f"s_add_u32 s15, s15, {OFF_FL+FL_H}")
    a("v_mov_b32 v3, 0")
    a(f"buffer_store_dword v2, v3, {WS}, s15 offen sc1")
    a("s_branch L_P3c")

def xcc_publish(a, t):
    _uid[0] += 1; L = f"L_xp{_uid[0]}"
    a("s_cmp_lg_u32 s3, 0")
    a(f"s_cbranch_scc1 {L}")
    a("s_getreg_b32 s15, hwreg(HW_REG_XCC_ID, 0, 4)")
    a(f"v_mov_b32 v{t}, s{S_TAG}")
    a(f"v_mov_b32 v{t+1}, s15")
    a(f"v_mov_b32 v{t+2}, 0")
    a("s_lshl_b32 s15, s4, 5")
    a("s_add_u32 s15, s15, s5")
    a("s_lshl_b32 s15, s15, 3")
    a(f"s_add_u32 s15, s15, {OFF_FL+FL_X}")
    a(f"buffer_store_dwordx2 {V(t,2)}, v{t+2}, {WS}, s15 offen sc1")
    a.label(L)
CODE_KB = [0]
def code_prefetch(a, t):
    if not PREFETCH_CODE: return
    _uid[0] += 1; L = f"L_pc{_uid[0]}"
    a("s_getpc_b64 s[52:53]")
    a.label(L)
    a(f"s_sub_u32 s52, s52, {L}-{KN}")
    a("s_subb_u32 s53, s53, 0")
    a(f"s_mov_b32 s54, L_code_end-{KN}")
    a("s_mov_b32 s55, 0x20000")
    a("s_lshl2_add_u32 s15, s5, s3")
    a("s_lshl_b32 s15, s15, 10")
    a(f"v_lshlrev_b32 v{t+4}, 4, v0")
    a(f"buffer_load_dwordx4 {V(t,4)}, v{t+4}, s[52:55], s15 offen")

FA = XO
def role_A(a):
    a.label("L_A")
    a("s_sub_u32 s6, s5, 20")
    a("s_and_b32 s7, s6, 1")
    a("s_lshr_b32 s6, s6, 1")
    a("s_lshl2_add_u32 s6, s4, s6")
    a("s_lshr_b32 s8, s6, 1")
    a("s_and_b32 s9, s6, 1")
    a("s_cmp_ge_u32 s3, 4")
    a("s_cbranch_scc0 L_Ac")
    va = Alloc("v", 2, VC)
    a("s_sub_u32 s10, s3, 4")
    a("s_lshl2_add_u32 s11, s8, s10")
    a("s_lshl1_add_u32 s11, s11, s9")
    a("s_lshl_b32 s52, s11, 6")
    a(f"s_mul_i32 s11, s11, {16*1280}")
    vi, vs, vA, vB, vw = va(), va(), va(), va(), va()
    a(f"v_lshrrev_b32 v{vi}, 2, v0")
    a(f"v_and_b32 v{vs}, 3, v0")
    a(f"v_mul_u32_u24 v{vA}, 1280, v{vi}")
    a(f"v_lshlrev_b32 v{vw}, 4, v{vs}")
    a(f"v_sub_u32 v{vB}, v{vA}, v{vw}")
    a(f"v_add_u32 v{vA}, v{vA}, v{vw}")
    a(f"v_add_u32 v{vB}, {624-256}, v{vB}")
    X = [[va(4, 4) for q in range(4)] for it in range(5)]
    GW = [[va(4, 4) for q in range(4)] for it in range(5)]
    a("s_waitcnt lgkmcnt(0)")
    stamp(a, 1)
    srd(a, 48, P_X, 2621440)
    def loads(D, sd, so, A_, B_):
        for it in range(5):
            a(f"buffer_load_dwordx4 {V(D[it][0],4)}, v{A_}, s[{sd}:{sd+3}], {so} offen offset:{64*it}")
            a(f"buffer_load_dwordx4 {V(D[it][2],4)}, v{A_}, s[{sd}:{sd+3}], {so} offen offset:{640+64*it}")
            a(f"buffer_load_dwordx4 {V(D[it][1],4)}, v{B_}, s[{sd}:{sd+3}], {so} offen offset:{256-64*it}")
            a(f"buffer_load_dwordx4 {V(D[it][3],4)}, v{B_}, s[{sd}:{sd+3}], {so} offen offset:{640+256-64*it}")
    loads(X, 48, "s11", vA, vB)
    after_kernarg(a)
    a(f"v_lshlrev_b32 v{vA}, 4, v{vs}")
    a(f"v_sub_u32 v{vB}, {624-256}, v{vA}")
    a(f"v_lshlrev_b32 v{vw}, 1, v{vs}")
    a(f"v_xor_b32 v{vw}, v{vw}, v{vi}")
    a(f"v_lshlrev_b32 v{vw}, 4, v{vw}")
    a(f"v_lshl_add_u32 v{vw}, v{vs}, 8, v{vw}")
    a("s_mul_i32 s12, s10, 5120")
    a(f"s_add_u32 s12, s12, {FA}")
    a(f"v_add_u32 v{vw}, s12, v{vw}")
    a("s_cmp_eq_u32 s7, 0")
    a("s_cselect_b32 s12, 1.0, -1.0")
    a("s_mov_b32 s13, s12")
    a("s_mov_b32 s14, 0xffff0000")
    U = [va(8, 2) for q in range(4)]
    O = [va(4, 4) for q in range(2)]
    for it in range(5):
        a(f"s_waitcnt vmcnt({4*(4-it)})")
        if it in (0, 4): stamp(a, 2 + it//4)
        for d in range(4):
            for q in range(4):
                if q in (0, 2):
                    a(f"v_lshlrev_b32 v{U[q]+2*d}, 16, v{X[it][q]+d}")
                    a(f"v_and_b32 v{U[q]+2*d+1}, s14, v{X[it][q]+d}")
                else:
                    a(f"v_and_b32 v{U[q]+2*d}, s14, v{X[it][q]+3-d}")
                    a(f"v_lshlrev_b32 v{U[q]+2*d+1}, 16, v{X[it][q]+3-d}")
        for d in range(4):
            p = lambda q: V(U[q]+2*d, 2)
            a(f"v_pk_fma_f32 {p(0)}, {p(0)}, s[12:13], {p(2)}")
            a(f"v_pk_fma_f32 {p(1)}, {p(3)}, s[12:13], {p(1)}")
        for d in range(4):
            p = lambda q: V(U[q]+2*d, 2)
            a(f"v_pk_add_f32 {p(2)}, {p(0)}, {p(1)}")
            a(f"v_pk_add_f32 {p(3)}, {p(0)}, {p(1)} neg_lo:[0,1] neg_hi:[0,1]")
        for d in range(4):
            a(f"v_cvt_pk_bf16_f32 v{O[0]+d}, v{U[2]+2*d}, v{U[2]+2*d+1}")
            a(f"v_cvt_pk_bf16_f32 v{O[1]+d}, v{U[3]+2*d}, v{U[3]+2*d+1}")
        a(f"ds_write_b128 v{vw}, {V(O[0],4)} offset:{1024*it}")
        a(f"ds_write_b128 v{vw}, {V(O[1],4)} offset:{20480+1024*it}")
    tag_ready(a)
    a("s_barrier")
    a("s_cmp_lg_u32 s7, 0")
    a("s_cbranch_scc1 L_Af_nog")
    srd(a, 48, P_GW, 1280)
    loads(GW, 48, "0", vA, vB)
    acc = O[0]
    a("s_waitcnt vmcnt(0)")
    first = True
    for it in range(5):
        for q in range(4):
            for d in range(4):
                a(f"v_dot2_f32_bf16 v{acc+d}, v{X[it][q]+d}, v{GW[it][q]+d}, " + ("0" if first else f"v{acc+d}"))
            first = False
    a(f"v_add_f32 v{acc}, v{acc}, v{acc+1}")
    a(f"v_add_f32 v{acc+2}, v{acc+2}, v{acc+3}")
    a(f"v_add_f32 v{acc}, v{acc}, v{acc+2}")
    for m in ("quad_perm:[1,0,3,2]", "quad_perm:[2,3,0,1]"):
        a(f"v_add_f32_dpp v{acc}, v{acc}, v{acc} {m} row_mask:0xf bank_mask:0xf")
    a(f"v_cvt_pk_bf16_f32 v{acc}, v{acc}, v{acc}")
    a(f"v_lshlrev_b32 v{acc}, 16, v{acc}")
    a(f"v_mul_f32 v{acc}, {f32(-LOG2E)}, v{acc}")
    a(f"v_exp_f32 v{acc}, v{acc}")
    a(f"v_add_f32 v{acc}, 1.0, v{acc}")
    a(f"v_rcp_f32 v{acc}, v{acc}")
    a(f"v_cvt_pk_bf16_f32 v{acc}, v{acc}, v{acc}")
    a(f"v_lshlrev_b32 v{acc}, 16, v{acc}")
    a(f"v_lshlrev_b32 v{vi}, 2, v{vi}")
    a(f"s_add_u32 s52, s52, {OFF_G}")
    a(f"buffer_store_dword v{acc}, v{vi}, {WS}, s52 offen sc1")
    a.label("L_Af_nog")
    p3_params(a)
    c_setup(a, 2)
    for st in range(NB3): c_issue(a, st)
    a(f"s_mov_b32 s{S_PRE}, 1")
    stamp(a, 4)
    a("s_branch L_F")
    a.label("L_Ac")
    va = Alloc("v", 2, 256)
    a("s_lshr_b32 s10, s3, 1")
    a("s_and_b32 s11, s3, 1")
    vi, vq, vk, vt, vj, vst, vrd = va(), va(), va(), va(), va(), va(), va()
    a(f"v_and_b32 v{vi}, 15, v0")
    a(f"v_lshrrev_b32 v{vq}, 4, v0")
    a("s_mul_i32 s12, s11, 160")
    a("s_add_u32 s12, s12, s7")
    a(f"v_lshl_add_u32 v{vk}, v{vi}, 1, s12")
    a(f"v_lshl_add_u32 v{vj}, v{vq}, 4, 1")
    a(f"v_cvt_f32_u32 v{vj}, v{vj}")
    a("s_cmp_eq_u32 s10, 0")
    a(f"s_cselect_b32 s13, 0, {f32(0.25)}")
    a("s_cselect_b32 s14, 0, 320")
    T = [[va(4, 4) for ks in range(5)] for kt in range(5)]
    C = [va(8, 2) for _ in range(2)]
    vkf, va0 = va(), va()
    v2c = va(2, 2)
    for kt in range(5):
        if kt == 0:
            a(f"v_cmp_eq_u32 vcc, 0, v{vk}")
            a(f"v_mov_b32 v{vt}, s14")
            a(f"v_cndmask_b32 v{vt}, v{vk}, v{vt}, vcc")
            a(f"v_cvt_f32_u32 v{vkf}, v{vt}")
        else:
            a(f"v_add_u32 v{vt}, {32*kt}, v{vk}")
            a(f"v_cvt_f32_u32 v{vkf}, v{vt}")
        a(f"v_mul_f32 v{vkf}, {f32(1/1280)}, v{vkf}")
        a(f"v_fma_f32 v{va0}, v{vkf}, v{vj}, s13")
        a(f"v_mul_f32 v{v2c}, {f32(64.0)}, v{vkf}")
        a(f"v_cos_f32 v{v2c}, v{v2c}")
        for ks in range(2):
            for e in range(8): a(f"v_fmamk_f32 v{C[ks]+e}, v{vkf}, {f32(2.0*e+64.0*ks)}, v{va0}")
            if ks == 0: a(f"v_add_f32 v{v2c}, v{v2c}, v{v2c}")
            for e in range(8): a(f"v_cos_f32 v{C[ks]+e}, v{C[ks]+e}")
        for ks in range(5):
            c = C[ks & 1]; o = C[(ks+1) & 1]
            if ks >= 2:
                for d in range(4):
                    a(f"v_pk_fma_f32 {V(c+2*d,2)}, {V(o+2*d,2)}, {V(v2c,2)}, {V(c+2*d,2)} op_sel_hi:[1,0,1] neg_lo:[0,0,1] neg_hi:[0,0,1]")
            for d in range(4): a(f"v_cvt_pk_bf16_f32 v{T[kt][ks]+d}, v{c+2*d}, v{c+2*d+1}")
        if kt == 1: after_kernarg(a)
    a(f"v_lshlrev_b32 v{vrd}, 1, v{vq}")
    a(f"v_xor_b32 v{vrd}, v{vrd}, v{vi}")
    a(f"v_lshlrev_b32 v{vrd}, 4, v{vrd}")
    a(f"v_lshl_add_u32 v{vrd}, v{vq}, 8, v{vrd}")
    a("s_mul_i32 s12, s10, 20480")
    a(f"s_add_u32 s12, s12, {FA}")
    a(f"v_add_u32 v{vrd}, s12, v{vrd}")
    a(f"v_lshlrev_b32 v{vst}, 15, v{vq}")
    a(f"v_lshl_add_u32 v{vst}, v{vi}, 3, v{vst}")
    a("s_lshl1_add_u32 s12, s7, s11")
    a(f"s_mul_i32 s12, s12, {80*8192}")
    a("s_lshl_b32 s13, s10, 12")
    a("s_add_u32 s12, s12, s13")
    a("s_lshl_b32 s13, s6, 7")
    a("s_add_u32 s12, s12, s13")
    a(f"s_add_u32 s12, s12, {OFF_R}")
    tag_ready(a)
    xcc_publish(a, C[0])
    Bf = [[va(4, 4) for nt in range(4)] for ks in range(5)]
    acc = [[va(4, 4) for nt in range(4)] for _ in range(2)]
    stamp(a, 1)
    a("s_barrier")
    stamp(a, 2)
    for ks in range(5):
        for nt in range(4): a(f"ds_read_b128 {V(Bf[ks][nt],4)}, v{vrd} offset:{nt*5120+ks*1024}")
        if ks == 2: a("s_waitcnt lgkmcnt(6)")
    def out(kt):
        for r in range(4):
            o = T[kt][r]; ac = acc[kt & 1]
            a(f"v_cvt_pk_bf16_f32 v{o}, v{ac[0]+r}, v{ac[1]+r}")
            a(f"v_cvt_pk_bf16_f32 v{o+1}, v{ac[2]+r}, v{ac[3]+r}")
            a(f"buffer_store_dwordx2 {V(o,2)}, v{vst}, {WS}, s12 offen sc1")
            a(f"s_add_u32 s12, s12, {8192 if r < 3 else 13*8192}")
    for kt in range(5):
        for ks in range(5):
            if kt == 0: a(f"s_waitcnt lgkmcnt({min(15, 16-4*ks)})")
            for nt in range(4):
                d = acc[kt & 1][nt]
                a(f"{MF16} {V(d,4)}, {V(T[kt][ks],4)}, {V(Bf[ks][nt],4)}, " + ("0" if ks == 0 else V(d, 4)))
            if kt > 0 and ks == 1: out(kt-1)
    out(4)
    stamp(a, 3)
    p3_params(a)
    a(f"s_mov_b32 s{S_PRE}, 0")
    a("s_branch L_F")

def role_W(a):
    a.label("L_W")
    va = Alloc("v", 2, VC)
    a("s_sub_u32 s6, s5, 28")
    a("s_lshl2_add_u32 s6, s4, s6")
    a("s_lshr_b32 s7, s6, 3")
    a("s_and_b32 s8, s6, 7")
    a("s_lshl4_add_u32 s9, s8, s7")
    a(f"s_mul_i32 s9, s9, {16*642}")
    vtid, vo = va(), va()
    a(f"v_lshl_add_u32 v{vtid}, s3, 6, v0")
    a(f"v_lshlrev_b32 v{vo}, 4, v{vtid}")
    L = [[[va(4, 4) for r in range(4)] for ar in range(2)] for it in range(2)]
    vo2 = va()
    a(f"v_add_u32 v{vo2}, 8192, v{vo}")
    a(f"v_cmp_gt_u32 vcc, 130, v{vtid}")
    a(f"v_mov_b32 v{L[0][0][0]}, 0x7fffffff")
    a(f"v_cndmask_b32 v{vo2}, v{L[0][0][0]}, v{vo2}, vcc")
    a("s_waitcnt lgkmcnt(0)")
    srd(a, 48, P_WR, 2048*642)
    srd(a, 52, P_WI, 2048*642)
    for it in range(2):
        for r in range(4):
            a(f"s_add_u32 s10, s9, {r*64*642}")
            for ar in range(2):
                a(f"buffer_load_dwordx4 {V(L[it][ar][r],4)}, v{(vo,vo2)[it]}, s[{48+4*ar}:{51+4*ar}], s10 offen")
    after_kernarg(a)
    a("s_mov_b32 s10, 0x05040100")
    a("s_mov_b32 s11, 0x07060302")
    a(f"s_mov_b32 s12, {(2**32+320)//321}")
    vf, vc, vk, vsw = va(), va(), va(), va()
    AD = [[va() for i in range(8)] for it in range(2)]
    O = [va(4, 4) for _ in range(2)]
    for it in range(2):
        for i in range(8):
            vad = AD[it][i]
            a(f"v_lshlrev_b32 v{vf}, 3, v{vtid}")
            a(f"v_add_u32 v{vf}, {4096*it+i}, v{vf}")
            a(f"v_mul_hi_u32 v{vc}, v{vf}, s12")
            a(f"v_mul_u32_u24 v{vk}, 321, v{vc}")
            a(f"v_sub_u32 v{vk}, v{vf}, v{vk}")
            a(f"v_lshrrev_b32 v{vsw}, 3, v{vk}")
            a(f"v_xor_b32 v{vsw}, v{vsw}, v{vc}")
            a(f"v_and_b32 v{vsw}, 15, v{vsw}")
            a(f"v_lshlrev_b32 v{vad}, 8, v{vk}")
            a(f"v_lshl_add_u32 v{vad}, v{vsw}, 4, v{vad}")
            if it == 1:
                a(f"v_cmp_gt_u32 vcc, 16, v{vc}")
                a(f"v_mov_b32 v{vsw}, {321*256}")
                a(f"v_cndmask_b32 v{vad}, v{vsw}, v{vad}, vcc")
    a(f"v_lshrrev_b32 v{vk}, 4, v{vtid}")
    a(f"v_and_b32 v{vc}, 15, v{vtid}")
    a(f"v_lshlrev_b32 v{vo}, 13, v{vk}")
    a(f"v_lshl_add_u32 v{vo}, v{vc}, 4, v{vo}")
    a("s_lshl_b32 s9, s6, 8")
    vr = [va() for _ in range(4)]
    a(f"v_lshrrev_b32 v{vsw}, 3, v{vk}")
    for n in range(4):
        a(f"v_add_u32 v{vf}, {4*n}, v{vsw}")
        a(f"v_xor_b32 v{vf}, v{vf}, v{vc}")
        a(f"v_lshlrev_b32 v{vf}, 4, v{vf}")
        a(f"v_lshl_add_u32 v{vr[n]}, v{vk}, 8, v{vf}")
    srd(a, 48, P_WS, SZ_WT, OFF_WT)
    tag_ready(a)
    for it in range(2):
        if it == 1:
            a("s_cmp_ge_u32 s3, 3")
            a("s_cbranch_scc1 L_W2")
        a(f"s_waitcnt vmcnt({8*(1-it)})")
        stamp(a, 1+it)
        for i in range(8):
            o = O[i & 1]
            for r in range(4): a(f"v_perm_b32 v{o+r}, v{L[it][1][r]+i//2}, v{L[it][0][r]+i//2}, s{10+(i&1)}")
            a(f"ds_write_b128 v{AD[it][i]}, {V(o,4)}")
    a.label("L_W2")
    a("s_waitcnt vmcnt(0) lgkmcnt(0)")
    a("s_barrier")
    stamp(a, 3)
    Q = [L[0][0][0] + 4*n for n in range(11)]
    for n in range(11):
        if n == 8:
            for q in range(4): a(f"v_add_u32 v{vr[q]}, 65536, v{vr[q]}")
        a(f"ds_read_b128 {V(Q[n],4)}, v{vr[n&3]} offset:{(n&7)*8192}")
    for n in range(11):
        a(f"s_waitcnt lgkmcnt({10-n})")
        a(f"buffer_store_dwordx4 {V(Q[n],4)}, v{vo}, s[48:51], s9 offen sc1")
        a(f"s_add_u32 s9, s9, {32*8192}")
    xcc_publish(a, O[0])
    stamp(a, 4)
    p3_params(a)
    a(f"s_mov_b32 s{S_PRE}, 0")

def role_F(a):
    a.label("L_F")
    va = Alloc("v", 2, VC)
    a("s_sub_u32 s6, 31, s5")
    a("s_lshl3_add_u32 s6, s6, s4")
    a("s_lshr_b32 s7, s3, 2")
    a("s_and_b32 s14, s3, 3")
    a("s_lshl1_add_u32 s7, s6, s7")
    a(f"s_mul_i32 s13, s14, {8*81920}")
    a(f"s_add_u32 s13, s13, {OFF_Z}")
    for c in range(2):
        b = 48 + 4*c
        if c == 1: a("s_add_u32 s7, s7, 192")
        a("s_and_b32 s10, s7, 1")
        a("s_mul_i32 s10, s10, 160")
        a("s_lshr_b32 s11, s7, 1")
        a("s_add_u32 s10, s10, s11")
        a(f"s_lshl_b32 s{b}, s10, 13")
        a(f"s_add_u32 s{b}, s{b}, {OFF_R}")
        a(f"s_add_u32 s{b+1}, s{b}, 4096")
        a(f"s_lshl_b32 s{b+2}, s10, 7")
        a(f"s_add_u32 s{b+2}, s{b+2}, s13")
        a(f"s_add_u32 s{b+3}, s{b+2}, 40960")
        a(f"s_lshl2_add_u32 s{8+c}, s7, s14")
        a(f"s_lshl_b32 s{8+c}, s{8+c}, 11")
        a(f"s_add_u32 s{8+c}, s{8+c}, {OFF_WT}")
        if c == 0:
            a("s_cmp_eq_u32 s7, 0")
            a(f"s_cselect_b32 s{b+1}, {DIS}, s{b+1}")
            a(f"s_cselect_b32 s{b+3}, {DIS}, s{b+3}")
            a("s_cselect_b32 s12, 0.5, 1.0")
        else:
            a("s_add_u32 s10, s13, 40960")
            a("s_cmp_eq_u32 s7, 320")
            a(f"s_cselect_b32 s{b}, {OFF_R+4096}, s{b}")
            a(f"s_cselect_b32 s{b+2}, s10, s{b+2}")
            a("s_cselect_b32 s10, 0.5, 1.0")
            a("s_cmp_ge_u32 s7, 320")
            a(f"s_cselect_b32 s{b+1}, {DIS}, s{b+1}")
            a(f"s_cselect_b32 s{b+3}, {DIS}, s{b+3}")
            a("s_cmp_gt_u32 s7, 320")
            a(f"s_cselect_b32 s{b}, {DIS}, s{b}")
            a(f"s_cselect_b32 s{b+2}, {DIS}, s{b+2}")
            a(f"s_cselect_b32 s{8+c}, {DIS}, s{8+c}")
    a("s_mov_b32 s13, s12"); a("s_mov_b32 s11, s10")
    vi, vq, vx, vwo, vt = va(), va(), va(), va(), va()
    a(f"v_and_b32 v{vi}, 15, v0")
    a(f"v_lshrrev_b32 v{vq}, 4, v0")
    a(f"v_lshlrev_b32 v{vx}, 9, v{vq}")
    a(f"v_lshl_add_u32 v{vx}, v{vi}, 3, v{vx}")
    a(f"v_lshlrev_b32 v{vwo}, 4, v0")
    X = [[[[va(4, 4) for ks in range(2)] for mt in range(2)] for pl in range(2)] for c in range(2)]
    WR = [va(8, 4) for c in range(2)]
    C64 = [va(4, 4) for _ in range(2)]; S64 = [va(4, 4) for _ in range(2)]; N64 = [va(4, 4) for _ in range(2)]
    C32 = [va(4, 4) for _ in range(2)]; S32 = [va(4, 4) for _ in range(2)]; N32 = [va(4, 4) for _ in range(2)]
    T1c, T1s, T2c, T2s = va(8, 2), va(8, 2), va(8, 2), va(8, 2)
    D = [[[va(4, 4) for t in range(2)] for pl in range(2)] for c in range(2)]
    OP = [[va(4, 4) for pl in range(2)] for c in range(2)]
    TM = va(8, 2)
    vk1, vqf, vif, va0 = va(), va(), va(), va()
    a(f"v_lshl_add_u32 v{vk1}, s14, 4, v{vi}")
    a(f"v_cvt_f32_u32 v{vk1}, v{vk1}")
    a(f"v_cvt_f32_u32 v{vqf}, v{vq}")
    a(f"v_cvt_f32_u32 v{vif}, v{vi}")
    def table(Cr, Sr, Nr, vidx, a0mul, consts):
        t0, t1 = D[0][0][0], D[0][1][0]
        a(f"v_mul_f32 v{va0}, v{vidx}, v{vqf}")
        a(f"v_mul_f32 v{va0}, {f32(a0mul)}, v{va0}")
        for e in range(8): a(f"v_fmamk_f32 v{t0+e}, v{vidx}, {f32(consts[e])}, v{va0}")
        for e in range(8): a(f"v_sin_f32 v{t1+e}, v{t0+e}")
        for e in range(8): a(f"v_cos_f32 v{t0+e}, v{t0+e}")
        for d in range(4): a(f"v_cvt_pk_bf16_f32 v{Sr+d}, v{t1+2*d}, v{t1+2*d+1}")
        for d in range(4): a(f"v_cvt_pk_bf16_f32 v{Nr+d}, -v{t1+2*d}, -v{t1+2*d+1}")
        for d in range(4): a(f"v_cvt_pk_bf16_f32 v{Cr+d}, v{t0+2*d}, v{t0+2*d+1}")
    for ks in range(2): table(C64[ks], S64[ks], N64[ks], vk1, 8/64, [(32*ks+e)/64 for e in range(8)])
    k2e = [16*(e >> 2) + (e & 3) for e in range(8)]
    a(f"v_mul_f32 v{va0}, v{vk1}, v{vqf}")
    a(f"v_mul_f32 v{va0}, {f32(4/2048)}, v{va0}")
    for e in range(8): a(f"v_fmamk_f32 v{T1c+e}, v{vk1}, {f32(k2e[e]/2048)}, v{va0}")
    for e in range(8): a(f"v_sin_f32 v{T1s+e}, v{T1c+e}")
    for e in range(8): a(f"v_cos_f32 v{T1c+e}, v{T1c+e}")
    a(f"s_cmp_eq_u32 s{S_PRE}, 1")
    a("s_cbranch_scc1 L_F_nodrain")
    a("s_waitcnt vmcnt(0)")
    a.label("L_F_nodrain")
    stamp(a, 5)
    a("s_barrier")
    a("s_cmp_lg_u32 s3, 0")
    a("s_cbranch_scc1 L_F_nf")
    flag_store(a, 6, OFF_FL+FL_R, TM)
    a.label("L_F_nf")
    for tt in range(2):
        if tt == 1: a(f"v_add_f32 v{vt}, {f32(16.0)}, v{vif}")
        table(C32[tt], S32[tt], N32[tt], vif if tt == 0 else vt, 4/32, [k/32 for k in k2e])
    a(f"v_lshlrev_b32 v{va0}, 2, v{vq}")
    a(f"v_lshl_add_u32 v{va0}, s14, 4, v{va0}")
    a(f"v_cvt_f32_u32 v{va0}, v{va0}")
    a(f"v_mul_f32 v{va0}, {f32(1/2048)}, v{va0}")
    for nt in range(2):
        n2 = vif if nt == 0 else vt
        a(f"v_mul_f32 v{T2c+4*nt}, v{n2}, v{va0}")
        for r in range(1, 4): a(f"v_fmamk_f32 v{T2c+4*nt+r}, v{n2}, {f32(r/2048)}, v{T2c+4*nt}")
    for e in range(8): a(f"v_sin_f32 v{T2s+e}, v{T2c+e}")
    for e in range(8): a(f"v_cos_f32 v{T2c+e}, v{T2c+e}")
    for e in range(8): a(f"v_mul_f32 v{T2s+e}, {f32(2.0/(640*2048))}, v{T2s+e}")
    for e in range(8): a(f"v_mul_f32 v{T2c+e}, {f32(2.0/(640*2048))}, v{T2c+e}")
    vlw, vlr, vzo = va(), [va(), va()], va()
    a(f"v_lshrrev_b32 v{vt}, 1, v{vi}")
    a(f"v_lshrrev_b32 v{vlw}, 1, v{vq}")
    a(f"v_lshl_add_u32 v{vlw}, s14, 1, v{vlw}")
    a(f"v_xor_b32 v{vlw}, v{vlw}, v{vt}")
    a(f"v_lshlrev_b32 v{vlw}, 4, v{vlw}")
    a(f"v_lshl_add_u32 v{vlw}, v{vi}, 7, v{vlw}")
    a(f"v_and_b32 v{va0}, 1, v{vq}")
    a(f"v_lshl_add_u32 v{vlw}, v{va0}, 3, v{vlw}")
    a(f"v_xor_b32 v{vlr[0]}, v{vq}, v{vt}")
    a(f"v_lshlrev_b32 v{vlr[0]}, 4, v{vlr[0]}")
    a(f"v_lshl_add_u32 v{vlr[0]}, v{vi}, 7, v{vlr[0]}")
    a("s_lshr_b32 s7, s3, 2")
    a("s_lshl_b32 s7, s7, 14")
    a(f"s_add_u32 s7, s7, {XO}")
    a(f"v_add_u32 v{vlw}, s7, v{vlw}")
    a(f"v_add_u32 v{vlr[0]}, s7, v{vlr[0]}")
    a(f"v_xor_b32 v{vlr[1]}, 64, v{vlr[0]}")
    a(f"v_mul_u32_u24 v{vzo}, {2*81920}, v{vq}")
    a(f"v_lshl_add_u32 v{vzo}, v{vi}, 3, v{vzo}")
    a("s_cmp_lt_u32 s3, 4")
    a("s_cbranch_scc1 L_F_lo")
    a(f"s_cmp_eq_u32 s{S_PRE}, 1")
    a("s_cbranch_scc1 L_F_go")
    a("s_mov_b64 s[0:1], s[10:11]"); a("s_mov_b32 s7, s12")
    c_setup(a, X[0][0][0][0])
    a("s_mov_b64 s[10:11], s[0:1]"); a("s_mov_b32 s12, s7"); a("s_mov_b32 s13, s7")
    for st in range(NB3): c_issue(a, st)
    a("s_branch L_F_go")
    a.label("L_F_lo")
    for i in range(5): a(f"v_mov_b32 v{VC+i}, 0")
    a("s_cmp_lg_u32 s3, 0")
    a("s_cbranch_scc1 L_F_go")
    a(f"v_and_b32 v{TM+1}, 31, v0")
    a(f"v_lshlrev_b32 v{TM+1}, 4, v{TM+1}")
    a(f"v_add_u32 v{TM+1}, 1024, v{TM+1}")
    poll(a, [vwo, TM+1], [TM+2, TM+3], OFF_FL+FL_R)
    a.label("L_F_go")
    a("s_barrier")
    stamp(a, 6)
    a("s_waitcnt vmcnt(24)")
    vq_ = VMQ(a)
    for c in range(2):
        for ks in range(2):
            for pl in range(2):
                for mt in range(2):
                    for hf in range(2):
                        vq_.issue(f"buffer_load_dwordx2 {V(X[c][pl][mt][ks]+2*hf,2)}, v{vx}, {WS}, s{48+4*c+pl} offen offset:{ks*2048+hf*256+mt*128} sc1", f"x{c}{ks}")
    for c in range(2):
        for mt in range(2): vq_.issue(f"buffer_load_dwordx4 {V(WR[c]+4*mt,4)}, v{vwo}, {WS}, s{8+c} offen offset:{1024*mt} sc1", f"w{c}")
    def mm(d, A, B, first): a(f"{MF16} {V(d,4)}, {V(A,4)}, {V(B,4)}, " + ("0" if first else V(d, 4)))
    def mulpack(c, cs, sn, conj):
        for t in range(2):
            for h in range(2):
                e = 4*t + 2*h
                cmul_pk(a, TM+4*h, TM+4*h+2, D[c][0][t]+2*h, D[c][1][t]+2*h, cs+e, sn+e, conj)
            for h in range(2):
                a(f"v_cvt_pk_bf16_f32 v{OP[c][0]+2*t+h}, v{TM+4*h}, v{TM+4*h+1}")
                a(f"v_cvt_pk_bf16_f32 v{OP[c][1]+2*t+h}, v{TM+4*h+2}, v{TM+4*h+3}")
    def st1(c):
        for ks in range(2):
            vq_.wait(f"x{c}{ks}")
            for mt in range(2):
                mm(D[c][0][mt], X[c][0][mt][ks], C64[ks], ks == 0)
                mm(D[c][1][mt], X[c][1][mt][ks], C64[ks], ks == 0)
            for mt in range(2):
                mm(D[c][0][mt], X[c][1][mt][ks], S64[ks], False)
                mm(D[c][1][mt], X[c][0][mt][ks], N64[ks], False)
    def st2(c):
        for t in range(2):
            mm(D[c][0][t], C32[t], OP[c][0], True)
            mm(D[c][1][t], C32[t], OP[c][1], True)
        for t in range(2):
            mm(D[c][0][t], S32[t], OP[c][1], False)
            mm(D[c][1][t], N32[t], OP[c][0], False)
    def st3(c):
        for t in range(2):
            mm(D[c][0][t], OP[c][0], C32[t], True)
            mm(D[c][1][t], OP[c][1], C32[t], True)
        for t in range(2):
            mm(D[c][0][t], OP[c][1], N32[t], False)
            mm(D[c][1][t], OP[c][0], S32[t], False)
    Wr = [X[c][0][0][0] for c in range(2)]; Wi = [X[c][0][1][0] for c in range(2)]
    def wun(c):
        vq_.wait(f"w{c}")
        for e in range(8):
            a(f"v_lshlrev_b32 v{Wr[c]+e}, 16, v{WR[c]+e}")
            a(f"v_and_b32 v{Wi[c]+e}, s7, v{WR[c]+e}")
        f = ("s[12:13]", "s[10:11]")[c]
        for d in range(4):
            a(f"v_pk_mul_f32 {V(Wr[c]+2*d,2)}, {V(Wr[c]+2*d,2)}, {f}")
            a(f"v_pk_mul_f32 {V(Wi[c]+2*d,2)}, {V(Wi[c]+2*d,2)}, {f}")
    a("s_mov_b32 s7, 0xffff0000")
    st1(0); stamp(a, 7); st1(1)
    mulpack(0, T1c, T1s, True); st2(0)
    mulpack(1, T1c, T1s, True); st2(1)
    wun(0); mulpack(0, Wr[0], Wi[0], False); st3(0)
    wun(1); mulpack(1, Wr[1], Wi[1], False); st3(1)
    for c in range(2):
        mulpack(c, T2c, T2s, False)
        for pl in range(2):
            for nt in range(2): a(f"ds_write_b64 v{vlw}, {V(OP[c][pl]+2*nt,2)} offset:{8192*c+4096*pl+2048*nt}")
    a("s_waitcnt lgkmcnt(0)")
    a("s_barrier")
    for c in range(2):
        for ks in range(2):
            for pl in range(2):
                for nt in range(2): a(f"ds_read_b128 {V(X[c][pl][nt][ks],4)}, v{vlr[ks]} offset:{8192*c+4096*pl+2048*nt}")
    for c in range(2):
        for ks in range(2):
            a(f"s_waitcnt lgkmcnt({12-8*c-4*ks})")
            for nt in range(2):
                mm(D[c][0][nt], C64[ks], X[c][0][nt][ks], ks == 0)
                mm(D[c][1][nt], C64[ks], X[c][1][nt][ks], ks == 0)
            for nt in range(2):
                mm(D[c][0][nt], N64[ks], X[c][1][nt][ks], False)
                mm(D[c][1][nt], S64[ks], X[c][0][nt][ks], False)
    a(f"v_add_u32 v{vx}, 81920, v{vzo}")
    for c in range(2):
        for nt in range(2):
            for pl in range(2):
                o = OP[c][pl] + 2*nt
                a(f"v_cvt_pk_bf16_f32 v{o}, v{D[c][pl][nt]}, v{D[c][pl][nt]+1}")
                a(f"v_cvt_pk_bf16_f32 v{o+1}, v{D[c][pl][nt]+2}, v{D[c][pl][nt]+3}")
                a(f"buffer_store_dwordx2 {V(o,2)}, v{(vzo,vx)[nt]}, {WS}, s{48+4*c+2+pl} offen sc1")
    stamp(a, 8)
    a("s_waitcnt vmcnt(0)")
    a("s_barrier")
    a("s_cmp_ge_u32 s3, 4")
    a("s_cbranch_scc1 L_P3l")
    a("s_cmp_lg_u32 s3, 0")
    a("s_cbranch_scc1 L_P3c")
    flag_store(a, 6, OFF_FL+FL_Z, TM)

G1O = EX
def role_P3(a):
    a.label("L_P3c")
    va = Alloc("v", 2, 256)
    vq_ = VMQ(a)
    vi, vq, vh, vt = va(), va(), va(), va()
    a(f"v_and_b32 v{vi}, 15, v0")
    a(f"v_lshrrev_b32 v{vq}, 4, v0")
    a(f"v_lshlrev_b32 v{vh}, 4, v0")
    a(f"s_lshr_b32 s10, s{S_T}, 1")
    a("s_lshl2_add_u32 s11, s10, s3")
    a(f"s_and_b32 s12, s{S_T}, 1")
    a("s_lshl1_add_u32 s11, s11, s12")
    a("s_mul_i32 s12, s11, 40960")
    a(f"s_add_u32 s12, s12, {OFF_H}")
    a(f"s_lshl_b32 s13, s{S_ROT}, 12")
    vc = [[va(), va()], [va(), va()]]
    vpa, vpm, vpb, vxo, vdo = va(), va(), va(), va(), va()
    HS = [va(16, 4) for _ in range(10)]
    CF = [va(20, 4) for _ in range(3)]
    ACC = va(20, 4)
    a(f"v_min_u32 v{vt}, 9, v0")
    a("s_mul_i32 s10, s10, 10")
    a(f"v_add_lshl_u32 v{vt}, v{vt}, s10, 4")
    a(f"v_add_u32 v{vt}, {FL_H}, v{vt}")
    poll(a, [vt], [vpa], OFF_FL)
    stamp(a, 9)
    for st in range(10):
        a("s_add_u32 s14, s12, s13")
        for f in range(4):
            vq_.issue(f"buffer_load_dwordx4 {V(HS[st]+4*f,4)}, v{vh}, {WS}, s14 offen offset:{1024*f} sc1", f"h{st}")
        a("s_add_u32 s13, s13, 4096")
        a("s_cmp_eq_u32 s13, 40960")
        a("s_cselect_b32 s13, 0, s13")
        if st == H_FIRST-1: break
    def hload(st):
        a("s_add_u32 s14, s12, s13")
        for f in range(4):
            vq_.issue(f"buffer_load_dwordx4 {V(HS[st]+4*f,4)}, v{vh}, {WS}, s14 offen offset:{1024*f} sc1", f"h{st}")
        a("s_add_u32 s13, s13, 4096")
        a("s_cmp_eq_u32 s13, 40960")
        a("s_cselect_b32 s13, 0, s13")
    a(f"v_lshrrev_b32 v{vt}, 1, v{vi}")
    a(f"v_xor_b32 v{vt}, v{vt}, v{vq}")
    a(f"v_lshlrev_b32 v{vt}, 4, v{vt}")
    a(f"v_lshl_add_u32 v{vc[0][0]}, v{vi}, 7, v{vt}")
    a(f"v_xor_b32 v{vc[0][1]}, 64, v{vc[0][0]}")
    for kk in range(2): a(f"v_add_u32 v{vc[1][kk]}, {3*SB}, v{vc[0][kk]}")
    a("s_lshl_b32 s10, s3, 11")
    a(f"s_add_u32 s10, s10, {XO}")
    a(f"v_add_u32 v{vpa}, s10, v{vh}")
    a(f"v_xor_b32 v{vpm}, {3*256}, v{vpa}")
    a(f"s_bitcmp1_b32 s{S_TY}, 0")
    a(f"s_cselect_b32 s10, {3*256}, 0")
    a(f"v_xor_b32 v{vpb}, s10, v{vpa}")
    a(f"v_lshlrev_b32 v{vdo}, 3, v{vq}")
    a(f"v_lshl_add_u32 v{vt}, s11, 4, v{vi}")
    a(f"v_mul_u32_u24 v{vxo}, 1280, v{vt}")
    a(f"v_add_u32 v{vxo}, v{vxo}, v{vdo}")
    a(f"v_lshl_add_u32 v{vt}, s3, 4, v{vi}")
    a(f"v_lshlrev_b32 v{vt}, 2, v{vt}")
    a(f"v_add_u32 v{vt}, {G1O}, v{vt}")
    srd(a, 48, P_X, 2621440)
    srd(a, 52, P_DSK, 1280)
    def read(u):
        s_, sub = divmod(u, 4); kk, pl = sub >> 1, sub & 1; buf = s_ % NB3
        for tl in range(5):
            a(f"ds_read_b128 {V(CF[u%3]+4*tl,4)}, v{vc[buf//3][kk]} offset:{(buf%3)*SB + pl*10240 + tl*2048}")
    def mf(u):
        s_, sub = divmod(u, 4)
        for tl in range(5):
            a(f"{MF16} {V(ACC+4*tl,4)}, {V(CF[u%3]+4*tl,4)}, {V(HS[s_]+4*sub,4)}, " + ("0" if u == 0 else V(ACC+4*tl, 4)))
    XD, DD, XP = HS[0], HS[1], HS[2]
    a("s_barrier")
    read(0); read(1)
    nxt = H_FIRST
    for u in range(40):
        s_, sub = divmod(u, 4)
        if u + 2 in (8, 16, 24):
            a("s_waitcnt lgkmcnt(0)")
            a("s_barrier")
        if u + 2 < 40: read(u+2)
        if sub == 0: vq_.wait(f"h{s_}")
        a(f"s_waitcnt lgkmcnt({5*min(2, 39-u)})")
        mf(u)
        if sub == 1 and nxt < 10: hload(nxt); nxt += 1
        if u == 4*EPI_ST:
            for tl in range(5):
                a(f"s_lshl_b32 s14, s{DB+tl}, 1")
                vq_.issue(f"buffer_load_dwordx2 {V(XD+2*tl,2)}, v{vxo}, s[48:51], s14 offen", "epi")
                vq_.issue(f"buffer_load_dwordx2 {V(DD+2*tl,2)}, v{vdo}, s[52:55], s14 offen", "epi")
        if u == 37:
            if "epi" in vq_.q: vq_.wait("epi")
            a("s_mov_b32 s14, 0xffff0000")
            W = HS[4]
            for i in range(10):
                a(f"v_lshlrev_b32 v{W}, 16, v{XD+i}")
                a(f"v_and_b32 v{W+1}, s14, v{XD+i}")
                a(f"v_lshlrev_b32 v{W+2}, 16, v{DD+i}")
                a(f"v_and_b32 v{W+3}, s14, v{DD+i}")
                a(f"v_pk_mul_f32 {V(XP+2*i,2)}, {V(W,2)}, {V(W+2,2)}")
    srd(a, 48, P_OUT, 5242880)
    a(f"v_lshlrev_b32 v{vxo}, 1, v{vxo}")
    a(f"s_bitcmp1_b32 s{S_TY}, 0")
    a("s_cselect_b32 s10, -1.0, 1.0"); a("s_mov_b32 s11, s10")
    a("s_cselect_b64 vcc, -1, 0")
    a(f"s_add_u32 s12, s{S_TY}, 1")
    a("s_bitcmp1_b32 s12, 1")
    a("s_cselect_b32 s12, 1.0, -1.0"); a("s_mov_b32 s13, s12")
    for i in range(10): a(f"v_pk_add_f32 {V(ACC+2*i,2)}, {V(ACC+2*i,2)}, {V(XP+2*i,2)}")
    a("s_barrier")
    P = [[HS[5+v]+4*g for g in range(4)] for v in range(3)]
    vg = HS[4]
    a(f"ds_read_b32 v{vg}, v{vt}")
    for v, (ad, o) in enumerate(((vpa, 0), (vpm, 0), (vpb, 1024))):
        for g in range(4): a(f"ds_read_b128 {V(P[v][g],4)}, v{ad} offset:{8192*g+o}")
    NEG = " neg_lo:[0,1] neg_hi:[0,1]"
    def fin(tl, src, rev):
        for h in range(2):
            if rev: s_, m = src+2*(1-h), " op_sel:[0,0,1] op_sel_hi:[1,0,0]"
            else: s_, m = src+2*h, " op_sel_hi:[1,0,1]"
            a(f"v_pk_fma_f32 {V(ACC+4*tl+2*h,2)}, {V(ACC+4*tl+2*h,2)}, {V(vg,2)}, {V(s_,2)}{m}")
        a(f"s_lshl_b32 s14, s{DB+tl}, 2")
        a(f"buffer_store_dwordx4 {V(ACC+4*tl,4)}, v{vxo}, s[48:51], s14 offen")
    for v in range(2):
        p = P[v]
        a(f"s_waitcnt lgkmcnt({8-4*v})")
        for h in range(2):
            a(f"v_pk_add_f32 {V(p[0]+2*h,2)}, {V(p[0]+2*h,2)}, {V(p[2]+2*h,2)}" + (NEG if v else ""))
            a(f"v_pk_add_f32 {V(p[1]+2*h,2)}, {V(p[1]+2*h,2)}, {V(p[3]+2*h,2)}" + (NEG if v else ""))
        for h in range(2):
            a(f"v_pk_add_f32 {V(p[2]+2*h,2)}, {V(p[0]+2*h,2)}, {V(p[1]+2*h,2)}")
            a(f"v_pk_add_f32 {V(p[3]+2*h,2)}, {V(p[0]+2*h,2)}, {V(p[1]+2*h,2)}{NEG}")
        if v == 0: fin(2, p[2], False); fin(0, p[3], False)
        else: fin(1, p[2], True); fin(3, p[3], True)
    p = P[2]
    a("s_waitcnt lgkmcnt(0)")
    for h in range(2):
        a(f"v_pk_fma_f32 {V(p[0]+2*h,2)}, {V(p[2]+2*h,2)}, s[10:11], {V(p[0]+2*h,2)}")
        a(f"v_pk_fma_f32 {V(p[1]+2*h,2)}, {V(p[3]+2*h,2)}, s[10:11], {V(p[1]+2*h,2)}")
    for h in range(2): a(f"v_pk_fma_f32 {V(p[0]+2*h,2)}, {V(p[1]+2*h,2)}, s[12:13], {V(p[0]+2*h,2)}")
    for r in range(4): a(f"v_cndmask_b32 v{p[1]+r}, v{p[0]+r}, v{p[0]+3-r}, vcc")
    fin(4, p[1], False)
    endpgm(a)
    a.label("L_P3l")
    va = Alloc("v", 2, VC)
    vq_ = VMQ(a)
    vi, vq, vz, vh, vt, vjf, va0, vkb, vsp, vf2 = [va() for _ in range(10)]
    ZL = [va(16, 4) for _ in range(5)]
    TB = va(40, 4); AA = va(32, 4); FR = va(16, 4); GG = va(4, 4)
    a("s_sub_u32 s6, s3, 4")
    a(f"v_and_b32 v{vi}, 15, v0")
    a(f"v_lshrrev_b32 v{vq}, 4, v0")
    a(f"v_lshlrev_b32 v{vz}, 3, v0")
    a(f"v_lshlrev_b32 v{vh}, 4, v0")
    v2c = FR; C = [AA, AA+8]
    a("s_and_b32 s10, s6, 1")
    a(f"v_lshl_add_u32 v{vkb}, v{vq}, 1, s10")
    a(f"v_cvt_f32_u32 v{vkb}, v{vkb}")
    a("s_cmp_lt_u32 s6, 2")
    a(f"s_cselect_b32 s10, 0, {f32(0.25)}")
    a("s_cmp_eq_u32 s6, 2")
    a("s_cselect_b32 s14, 16, 0")
    a(f"v_cmp_gt_u32 vcc, s14, v0")
    T = [[TB + 20*cl + 4*ks for ks in range(5)] for cl in range(2)]
    a("s_bfe_u32 s9, s5, 0x10002")
    a("s_mul_i32 s9, s9, 80")
    a("s_add_u32 s9, s9, 64")
    a(f"s_mov_b32 s8, s{DB}")
    for cl in range(2):
        a(f"s_lshl1_add_u32 s14, s{8+cl}, 1")
        a(f"v_lshl_add_u32 v{vjf}, v{vi}, 1, s14")
        a(f"v_cvt_f32_u32 v{vjf}, v{vjf}")
        a(f"v_mul_f32 v{vjf}, {f32(1/1280)}, v{vjf}")
        a(f"v_fma_f32 v{va0}, v{vjf}, v{vkb}, s10")
        a(f"v_mul_f32 v{v2c}, {f32(64.0)}, v{vjf}")
        a(f"v_cos_f32 v{v2c}, v{v2c}")
        a(f"v_fmamk_f32 v{vsp}, v{vjf}, {f32(320.0)}, v{va0}")
        a(f"v_cndmask_b32 v{vsp}, v{va0}, v{vsp}, vcc")
        a(f"v_cos_f32 v{vsp}, v{vsp}")
        for ks in range(2):
            for e in range(8): a(f"v_fmamk_f32 v{C[ks]+e}, v{vjf}, {f32(8.0*e+64.0*ks)}, v{va0}")
            if ks == 0: a(f"v_add_f32 v{v2c}, v{v2c}, v{v2c}")
            for e in range(8): a(f"v_cos_f32 v{C[ks]+e}, v{C[ks]+e}")
        for ks in range(5):
            c = C[ks & 1]; o = C[(ks+1) & 1]
            if ks >= 2:
                for d in range(4):
                    a(f"v_pk_fma_f32 {V(c+2*d,2)}, {V(o+2*d,2)}, {V(v2c,2)}, {V(c+2*d,2)} op_sel_hi:[1,0,1] neg_lo:[0,0,1] neg_hi:[0,0,1]")
            for d in range(4):
                lo = vsp if (ks == 0 and d == 0) else c+2*d
                a(f"v_cvt_pk_bf16_f32 v{T[cl][ks]+d}, v{lo}, v{c+2*d+1}")
        if cl == 0:
            a("s_waitcnt vmcnt(0)")
            a("s_barrier")
            stamp(a, 9)
    a(f"s_lshl2_add_u32 s10, s{S_T}, s6")
    a("s_mul_i32 s10, s10, 20480")
    a(f"s_add_u32 s10, s10, {OFF_Z}")
    a(f"s_lshr_b32 s11, s{S_T}, 1")
    a("s_lshl_b32 s11, s11, 9")
    a(f"s_and_b32 s12, s{S_T}, 1")
    a("s_lshl_b32 s12, s12, 6")
    a("s_add_u32 s11, s11, s12")
    a(f"s_add_u32 s11, s11, {OFF_G}")
    a(f"v_lshlrev_b32 v{vt}, 2, v{vi}")
    a(f"v_and_b32 v{vf2}, 31, v0")
    a(f"v_lshlrev_b32 v{vf2}, 4, v{vf2}")
    a(f"v_add_u32 v{vf2}, 1024, v{vf2}")
    a("s_mov_b32 s52, 0x05040100")
    a("s_mov_b32 s53, 0x07060302")
    a("s_barrier")
    c_issue(a, 6); c_issue(a, 7)
    a("s_barrier")
    c_issue(a, 8); c_issue(a, 9)
    a("s_waitcnt vmcnt(0)")
    a("s_barrier")
    poll(a, [vh, vf2], [vjf, va0], OFF_FL+FL_Z)
    stamp(a, 7)
    for ks in range(5):
        for e in range(8):
            vq_.issue(f"buffer_load_dwordx2 {V(ZL[ks]+2*e,2)}, v{vz}, {WS}, s10 offen offset:{512*e} sc1", f"z{ks}")
        if ks < 4: a("s_add_u32 s10, s10, 4096")
    for r in range(4): vq_.issue(f"buffer_load_dword v{GG+r}, v{vt}, {WS}, s11 offen offset:{128*r} sc1", "g")
    for ks in range(5):
        vq_.wait(f"z{ks}")
        for r in range(4):
            for d in range(4):
                a(f"v_perm_b32 v{FR+4*r+d}, v{ZL[ks]+2*(2*d+1)+(r>>1)}, v{ZL[ks]+2*(2*d)+(r>>1)}, s{52+(r&1)}")
        for r in range(4):
            for cl in range(2):
                d = AA + 8*r + 4*cl
                a(f"{MF16} {V(d,4)}, {V(T[cl][ks],4)}, {V(FR+4*r,4)}, " + ("0" if ks == 0 else V(d, 4)))
    a("s_lshl_b32 s10, s6, 13")
    a(f"s_add_u32 s10, s10, {XO}")
    a(f"v_add_u32 v{vz}, s10, v{vh}")
    vq_.wait("g")
    a(f"v_add_u32 v{vt}, {G1O}, v{vt}")
    for r in range(4):
        a(f"v_sub_f32 v{FR+r}, 1.0, v{GG+r}")
        a(f"v_cvt_pk_bf16_f32 v{FR+r}, v{FR+r}, v{FR+r}")
        a(f"v_lshlrev_b32 v{FR+r}, 16, v{FR+r}")
        a(f"ds_write_b32 v{vt}, v{FR+r} offset:{64*r}")
    for r in range(4):
        sel = " op_sel_hi:[1,0]" if r % 2 == 0 else " op_sel:[0,1]"
        for h in range(4): a(f"v_pk_mul_f32 {V(AA+8*r+2*h,2)}, {V(AA+8*r+2*h,2)}, {V(GG+(r&2),2)}{sel}")
        for cl in range(2): a(f"ds_write_b128 v{vz}, {V(AA+8*r+4*cl,4)} offset:{2048*r+1024*cl}")
    a("s_waitcnt lgkmcnt(0)")
    stamp(a, 8)
    a("s_barrier")
    a("s_cmp_lg_u32 s2, 0")
    a("s_cbranch_scc1 L_P3l_end")
    a("s_cmp_lg_u32 s3, 7")
    a("s_cbranch_scc1 L_P3l_end")
    a(f"v_add_u32 v{vz}, {FL_H}, v{vh}")
    a(f"v_add_u32 v{vt}, 1024, v{vz}")
    a(f"v_add_u32 v{vf2}, {FL_H+1024}, v{vf2}")
    poll(a, [vz, vt, vf2], [vjf, va0, vkb], OFF_FL)
    a(f"v_mov_b32 v{vjf}, s{S_TAG}")
    a(f"v_mov_b32 v{vz}, {OFF_FL+FL_E}")
    a(f"buffer_store_dword v{vjf}, v{vz}, {WS}, 0 offen sc1")
    a.label("L_P3l_end")
    endpgm(a)

PRE_B = 2; H_FIRST = 4; EPI_ST = 5; PREFETCH_CODE = True
def gen():
    a = Asm()
    if DEBUG:
        for i in range(NSTAMP): stamp(a, i)
    a("s_load_dwordx16 s[16:31], s[0:1], 0")
    a("s_load_dwordx16 s[32:47], s[0:1], 64")
    a("s_cmp_ge_u32 s2, 256")
    a("s_cbranch_scc1 L_exit")
    a("v_lshrrev_b32 v1, 6, v0")
    a("v_and_b32 v0, 63, v0")
    a("v_readfirstlane_b32 s3, v1")
    a("s_and_b32 s4, s2, 7")
    a("s_lshr_b32 s5, s2, 3")
    a("s_cmp_lt_u32 s5, 20")
    a("s_cbranch_scc1 L_B")
    a("s_cmp_lt_u32 s5, 28")
    a("s_cbranch_scc1 L_A")
    a("s_branch L_W")
    a.label("L_exit")
    a("s_endpgm")
    role_B(a); role_A(a); role_W(a); role_F(a); role_P3(a)
    a.label("L_code_end")
    return a.text()
def build():
    s = "; @launch grid=(256,1,1) block=(512,1,1) lds=163840\n" + HEADER + kernel_begin(KN) + gen()
    s += rodata_begin() + kd(KN, 256, 102)
    return s
if __name__ == "__main__":
    out = sys.argv[1] if len(sys.argv) > 1 else "f.s"
    DEBUG = len(sys.argv) > 2
    if DEBUG and sys.argv[2] == "cyc": CLK[0] = "s_memtime"
    if DEBUG and sys.argv[2] == "dbgout": DBGOUT[0] = True
    open(out, "w").write(build())
```
